```python
import torch

def _softmax(x, axis=-1):
    return torch.softmax(x, dim=axis)

def _gelu(x):
    return torch.nn.functional.gelu(x, approximate='tanh')

def _silu(x):
    return torch.nn.functional.silu(x)

def _sigmoid(x):
    return torch.sigmoid(x)

def _layernorm(x, axis=-1, eps=1e-05):
    m = x.mean(dim=axis, keepdim=True)
    v = x.var(dim=axis, keepdim=True, unbiased=False)
    return (x - m) / torch.sqrt(v + eps)

def _scatter_add(tgt, idx, src, axis=0):
    return tgt.clone().index_add_(axis, idx, src)

def _segment_sum(src, seg, n):
    out = torch.zeros((n,) + src.shape[1:], dtype=src.dtype)
    return out.index_add_(0, seg, src)

def _pad(x, pw):
    flat = tuple((v for pair in reversed(pw) for v in pair))
    return torch.nn.functional.pad(x, flat)
kernel_name = 'gather_scatter__tensor_product_equiv_mace__graph'

def setup_inputs():

    _w = lambda a: (lambda t: t.to(torch.bfloat16) if t.is_floating_point() else t)(torch.as_tensor(a))
    N, deg = (10000, 64)
    Lmax, C, De = (1, 64, 4)
    M = (Lmax + 1) ** 2
    E = N * deg
    src = (lambda lo, hi, *s: torch.randint(lo, hi, s))(0, N, E).to(torch.int64)
    dst = (lambda lo, hi, *s: torch.randint(lo, hi, s))(0, N, E).to(torch.int64)
    r = (lambda *s: torch.randn(*s, dtype=torch.bfloat16) * 0.05)(E, 3).to(float)
    r = r / (torch.linalg.norm(r, dim=-1, keepdim=True).to(float) + 1e-06)
    rx, ry, rz = (r[:, 0].clone(), r[:, 1].clone(), r[:, 2].clone())
    x2, y2, z2 = (rx * rx, ry * ry, rz * rz)
    sh_list = [torch.ones_like(rx), rx, ry, rz, rx * ry, ry * rz, 2.0 * z2 - x2 - y2, rx * rz, x2 - y2, ry * (3.0 * x2 - y2), rx * ry * rz, ry * (4.0 * z2 - x2 - y2), rz * (2.0 * z2 - 3.0 * x2 - 3.0 * y2), rx * (4.0 * z2 - x2 - y2), rz * (x2 - y2), rx * (x2 - 3.0 * y2)]
    sh16 = torch.stack(sh_list, dim=-1).to(float)
    pad = max(0, M - 16)
    sh_full = torch.cat([sh16, torch.zeros((E, pad), dtype=float)], dim=-1)[:, :M]
    cg = ((lambda *s: torch.randn(*s, dtype=torch.bfloat16) * 0.05)(M, M, M) * (1.0 / float(M))).to(float)
    return {'x': _w(((lambda *s: torch.randn(*s, dtype=torch.bfloat16) * 0.05)(N, M, C) * 0.3).to(float)), 'src': _w(src), 'dst': _w(dst), 'sh': _w(sh_full.to(float)), 'edge_attr': _w(((lambda *s: torch.randn(*s, dtype=torch.bfloat16) * 0.05)(E, De) * 0.3).to(float)), 'cg': _w(cg), 'w_r': _w(((lambda *s: torch.randn(*s, dtype=torch.bfloat16) * 0.05)(De, C) * (1.0 / float(De) ** 0.5)).to(float)), 'w_out': _w(((lambda *s: torch.randn(*s, dtype=torch.bfloat16) * 0.05)(C, C) * (1.0 / float(C) ** 0.5)).to(float))}

def reference(x, src, dst, sh, edge_attr, cg, w_r, w_out):
    N = x.shape[0]
    M = x.shape[1]
    C = x.shape[2]
    h = x[src]
    tp = torch.einsum('uvw,euc,ev->ewc', cg, h, sh)
    rw = edge_attr @ w_r
    msg = tp * rw[:, None, :]
    msg2 = msg.reshape(-1, M * C)
    agg = _segment_sum(msg2, dst, N).reshape(N, M, C)
    out = torch.einsum('nmc,cd->nmd', agg, w_out)
    return out
```

```python
import re

class Asm:
    def __init__(self):
        self.lines = []
    def __call__(self, s=""):
        for l in s.split("\n"):
            self.lines.append(l)
    def label(self, name):
        self.lines.append(name + ":")
    def text(self):
        out = []
        for l in self.lines:
            t = l.strip()
            if not t:
                continue
            if t.endswith(":") or t.startswith(".") or t.startswith(";"):
                out.append(t)
            else:
                out.append("    " + t)
        return "\n".join(out) + "\n"

def vr(a, n=1):
    return f"v{a}" if n == 1 else f"v[{a}:{a+n-1}]"
def sr(a, n=1):
    return f"s{a}" if n == 1 else f"s[{a}:{a+n-1}]"

_reg = re.compile(r"^(-?)(?:\|)?([vsa])(?:(\d+)|\[(\d+):(\d+)\])")
def _regs(op):
    op = op.strip()
    if op == "vcc": return {("s", "vcc")}
    if op == "exec": return {("s", "exec")}
    if op == "m0": return {("s", "m0")}
    m = _reg.match(op)
    if not m: return set()
    k = m.group(2)
    if m.group(3) is not None: return {(k, int(m.group(3)))}
    return {(k, i) for i in range(int(m.group(4)), int(m.group(5)) + 1)}

class Ins:
    def __init__(self, text, idx):
        self.text = text; self.idx = idx
        t = text.split(";")[0].strip()
        p = t.split(None, 1)
        self.op = p[0]
        rest = p[1] if len(p) > 1 else ""
        ops = [o.strip() for o in rest.split(",")] if rest else []
        self.mods = ""
        if ops:
            q = ops[-1].split(None, 1)
            ops[-1] = q[0]
            self.mods = q[1] if len(q) > 1 else ""
        self.ops = ops
        op = self.op
        self.is_mfma = op.startswith("v_mfma")
        self.is_valu = op.startswith("v_") and not self.is_mfma
        self.is_salu = op.startswith("s_")
        self.is_ds = op.startswith("ds_")
        self.is_vmem = op.startswith(("buffer_", "global_"))
        self.is_dpp = "_dpp" in op
        self.w = set(); self.r = set()
        R = [_regs(o) for o in ops]
        if self.is_mfma:
            self.w = R[0]; self.a = R[1]; self.b = R[2]; self.c = R[3]; self.r = R[1] | R[2] | R[3]
            self.passes = 8 if "32x32" in op else 4
        elif self.is_valu:
            nd = 1
            if op.startswith(("v_add_co", "v_sub_co", "v_addc_co", "v_subb_co", "v_mad_u64")): nd = 2
            for x in R[:nd]: self.w |= x
            for x in R[nd:]: self.r |= x
            if op.startswith(("v_fmac", "v_swap", "v_writelane", "v_permlane")) or self.is_dpp: self.r |= R[0]
            if op.startswith(("v_swap", "v_permlane16_swap", "v_permlane32_swap")): self.w |= R[1]
            if op.startswith("v_cmpx"): self.w |= {("s", "exec")}
        elif self.is_ds:
            if op.startswith(("ds_read", "ds_bpermute", "ds_permute", "ds_swizzle")) or "_rtn" in op:
                self.w = R[0]
                for x in R[1:]: self.r |= x
            else:
                for x in R: self.r |= x
        elif self.is_vmem:
            if "load" in op and " lds" not in (" " + self.mods) and "load_lds" not in op:
                self.w = R[0]
                for x in R[1:]: self.r |= x
            else:
                for x in R: self.r |= x
            self.ldsdma = " lds" in (" " + self.mods) or "load_lds" in op
        elif self.is_salu:
            if op.startswith(("s_cmp", "s_cbranch", "s_branch", "s_waitcnt", "s_nop", "s_barrier", "s_endpgm", "s_setprio", "s_sleep", "s_bitcmp")):
                for x in R: self.r |= x
            else:
                if R: self.w = R[0]
                for x in R[1:]: self.r |= x
                if "saveexec" in op: self.w |= {("s", "exec")}
        self.states = 1
        if op == "s_nop": self.states = int(ops[0], 0) + 1

def need(p, c):
    n = 0
    vw = {x for x in p.w if x[0] in "va"}
    sw = {x for x in p.w if x[0] == "s"}
    if p.is_valu:
        if c.is_mfma and vw & c.r: n = max(n, 2)
        if c.is_mfma and ("s", "exec") in sw: n = max(n, 4)
        if c.is_valu and c.is_dpp and vw & c.r: n = max(n, 2)
        if c.is_valu and c.is_dpp and ("s", "exec") in sw: n = max(n, 5)
        if c.op.startswith(("v_readlane", "v_readfirstlane")) and vw & c.r: n = max(n, 1)
        if c.op.startswith("v_permlane") and vw & c.r: n = max(n, 2)
        if c.is_valu and sw & c.r:
            n = max(n, 4 if c.op.startswith(("v_readlane", "v_writelane")) else 2)
        if c.op.startswith(("v_readlane", "v_readfirstlane", "v_writelane")) and ("s", "exec") in sw: n = max(n, 4)
        if c.is_vmem and sw & c.r: n = max(n, 5)
        if p.op.startswith(("v_exp", "v_log", "v_rcp", "v_rsq", "v_sqrt", "v_sin", "v_cos")) and c.is_valu and vw & c.r: n = max(n, 1)
        if ("dst_sel" in p.mods and "dst_sel:DWORD" not in p.mods) and c.is_valu and vw & (c.r | c.w): n = max(n, 1)
    if p.is_mfma:
        ps = p.passes
        if c.is_mfma:
            if p.w & (c.a | c.b): n = max(n, {4: 8, 8: 12}[ps])
            if p.w & c.c and not (p.w == c.c and p.passes == c.passes): n = max(n, {4: 6, 8: 10}[ps])
            if p.w & c.w and not (p.w & c.c): n = max(n, 0)
        elif c.is_valu or c.is_ds or c.is_vmem:
            if p.w & (c.r | c.w): n = max(n, {4: 8, 8: 12}[ps])
            if c.is_valu and p.c & c.w: n = max(n, {4: 3, 8: 7}[ps])
    if p.is_salu and ("s", "m0") in sw and c.is_vmem and getattr(c, "ldsdma", False): n = max(n, 1)
    if p.is_vmem and "store" in p.op and ("x4" in p.op or "x3" in p.op):
        data = set()
        for o in p.ops:
            q = _regs(o)
            if len(q) >= 3 and all(x[0] == "v" for x in q): data |= q
        if data & c.w: n = max(n, 2 if c.is_valu else 1)
    return n

def check(text):
    ins = []; labels = {}
    for l in text.split("\n"):
        t = l.split(";")[0].strip()
        if not t or t.startswith("."): continue
        if t.endswith(":"):
            labels[t[:-1]] = len(ins); continue
        ins.append(Ins(t, len(ins)))
    def succ(i):
        x = ins[i]
        if x.op == "s_endpgm": return []
        if x.op == "s_branch": return [labels[x.ops[0]]]
        if x.op.startswith("s_cbranch"): return [i + 1, labels[x.ops[0]]]
        return [i + 1] if i + 1 < len(ins) else []
    probs = set()
    for i, p in enumerate(ins):
        if not (p.is_valu or p.is_mfma or p.is_vmem or (p.is_salu and ("s", "m0") in p.w)): continue
        stack = [(j, 0) for j in succ(i)]; seen = {}
        while stack:
            j, d = stack.pop()
            if d >= 13 or j >= len(ins): continue
            if j in seen and seen[j] <= d: continue
            seen[j] = d
            c = ins[j]
            n = need(p, c)
            if n > d: probs.add((i, j, n, d))
            for k in succ(j): stack.append((k, d + c.states))
    for (i, j, n, d) in sorted(probs):
        print(f"HAZARD: need {n} have {d}:\n   {ins[i].text}\n   {ins[j].text}")
    return len(probs)
```

```python
import sys, argparse
from asmlib import Asm, vr, sr, check

HDR = """; Kernarg layout for this problem (88 bytes, ptrs only, base s[0:1]):
"""

NCH = 256
CH = 2500
CS = 2560
TAB_OFF = 0
IDX_OFF = 0x40000
PAY_OFF = 0x300000
TS_OFF = 0x1000000
MAGIC = 429497
XBYTES = 5120000

def dpp_scan(a, v):
    for sh in (1, 2, 4, 8):
        a("s_nop 1")
        a(f"v_add_u32_dpp {v}, {v}, {v} row_shr:{sh} row_mask:0xf bank_mask:0xf bound_ctrl:0")
    a("s_nop 1")
    a(f"v_add_u32_dpp {v}, {v}, {v} row_bcast:15 row_mask:0xa bank_mask:0xf")
    a("s_nop 1")
    a(f"v_add_u32_dpp {v}, {v}, {v} row_bcast:31 row_mask:0xc bank_mask:0xf")

class Stamps:
    def __init__(self, a, on, base, kidx):
        self.a = a; self.on = on; self.base = base; self.n = 0; self.kidx = kidx
    def __call__(self):
        if not self.on: return
        self.a(f"s_memrealtime {sr(self.base + 2*self.n, 2)}")
        self.a("s_waitcnt lgkmcnt(0)")
        self.n += 1
    def dump(self, sws, vt):
        if not self.on: return
        a = self.a
        a("s_mov_b64 exec, -1")
        a(f"v_lshrrev_b32 {vr(vt)}, 6, v0")
        a(f"s_lshl_b32 s3, s2, 4")
        a(f"s_add_u32 s3, s3, {self.kidx*256*16}")
        a(f"v_add_u32 {vr(vt)}, s3, {vr(vt)}")
        a(f"v_lshlrev_b32 {vr(vt)}, 6, {vr(vt)}")
        a(f"v_add_u32 {vr(vt)}, {TS_OFF}, {vr(vt)}")
        a("s_mov_b64 exec, 1")
        for i in range(self.n):
            a(f"v_mov_b32 {vr(vt+1)}, {sr(self.base + 2*i)}")
            a(f"global_store_dword {vr(vt)}, {vr(vt+1)}, {sr(sws,2)} offset:{4*i}")

def phase_shift(P):
    return {1: None, 2: 31, 4: 30}[P]

def gen_k1(a, o):
    HIST, BASE, IDXS, PAYS = 0, 1024, 2048, 12288
    st = Stamps(a, o.ts, 60, 0)
    ldm = " nt" if o.k1nt else ""
    stm = {"plain": "", "nt": " nt", "sc1": " sc1"}[o.k1st]
    a(".p2align 8")
    a.label("bucket_kernel")
    a(f"s_cmp_ge_u32 s2, {NCH}")
    a("s_cbranch_scc1 K1_END")
    a("s_load_dwordx8 s[8:15], s[0:1], 8")
    a("s_load_dwordx2 s[16:17], s[0:1], 80     ; ws")
    a("s_load_dwordx2 s[18:19], s[0:1], 0      ; x")
    a(f"s_mul_i32 s3, s2, {CH*4}")
    a("v_lshl_add_u32 v1, v0, 4, s3")
    a("v_lshlrev_b32 v3, 2, v0")
    a("v_mov_b32 v45, 0")
    a("v_lshlrev_b32 v2, 1, v1")
    a("ds_write_b32 v3, v45")
    a(f"v_cmp_gt_u32 s[20:21], s3, v0") if False else None
    a(f"v_cmp_gt_u32 vcc, {CH//4}, v0")
    a("s_mov_b64 s[20:21], vcc")
    a("s_mov_b64 exec, vcc")
    a("s_waitcnt lgkmcnt(0)")
    st()
    a(f"global_load_dwordx4 v[4:7], v1, s[10:11]{ldm}")
    a(f"global_load_dwordx4 v[8:11], v1, s[8:9]{ldm}")
    a(f"global_load_dwordx4 v[12:15], v2, s[12:13]{ldm}")
    a(f"global_load_dwordx4 v[16:19], v2, s[12:13] offset:16{ldm}")
    a(f"global_load_dwordx4 v[20:23], v2, s[14:15]{ldm}")
    a(f"global_load_dwordx4 v[24:27], v2, s[14:15] offset:16{ldm}")
    a(f"s_mov_b32 s22, {MAGIC}")
    a("s_movk_i32 s23, 625")
    a("v_mov_b32 v45, 1")
    a("s_barrier")
    a("s_waitcnt vmcnt(5)")
    st()
    for i in range(4):
        a(f"v_mul_u32_u24 v{28+i}, s22, v{4+i}")
    for i in range(4):
        a(f"v_lshrrev_b32 v{36+i}, 24, v{28+i}       ; bucket")
    for i in range(4):
        a(f"v_lshlrev_b32 v{28+i}, 2, v{36+i}")
        a(f"ds_add_rtn_u32 v{32+i}, v{28+i}, v45 offset:{HIST}")
    for i in range(4):
        a(f"v_mad_u32_u24 v{36+i}, v{36+i}, s23, 15")
    for i in range(4):
        a(f"v_lshrrev_b32 v{36+i}, 4, v{36+i}")
    for i in range(4):
        a(f"v_sub_u32 v{4+i}, v{4+i}, v{36+i}")
    a("s_mov_b64 exec, -1")
    a("v_and_b32 v46, 63, v0")
    a("v_lshlrev_b32 v46, 4, v46")
    a("s_waitcnt lgkmcnt(0)")
    a("s_barrier")
    a(f"ds_read_b128 v[36:39], v46 offset:{HIST}")
    a("s_waitcnt vmcnt(4)")
    ps = phase_shift(o.P)
    if ps is not None:
        for i in range(4):
            a(f"v_mul_u32_u24 v{40+i}, s22, v{8+i}")
        for i in range(4):
            a(f"v_lshrrev_b32 v{40+i}, {ps}, v{40+i}")
        for i in range(4):
            a(f"v_lshl_or_b32 v{4+i}, v{40+i}, 6, v{4+i}")
    for i in range(4):
        a(f"v_lshl_or_b32 v{4+i}, v{8+i}, 9, v{4+i}")
    a("s_waitcnt lgkmcnt(0)")
    a("v_add_u32 v42, v36, v37")
    a("v_add_u32 v43, v42, v38")
    a("v_add_u32 v44, v43, v39")
    a("v_mov_b32 v47, v44")
    dpp_scan(a, "v47")
    a("v_sub_u32 v40, v47, v44")
    a("v_add_u32 v41, v40, v36")
    a("v_add_u32 v42, v40, v42")
    a("v_add_u32 v43, v40, v43")
    a(f"ds_write_b128 v46, v[40:43] offset:{BASE}")
    a("v_cmp_gt_u32 vcc, 64, v0")
    for i in range(4):
        a(f"v_lshl_or_b32 v{36+i}, v{36+i}, 16, v{40+i}")
    a("s_lshl_b32 s3, s2, 10")
    a("v_add_u32 v47, s3, v46")
    a("s_mov_b64 exec, s[20:21]")
    a("s_waitcnt lgkmcnt(0)")
    for i in range(4):
        a(f"ds_read_b32 v{8+i}, v{28+i} offset:{BASE}")
    a("s_waitcnt lgkmcnt(0)")
    for i in range(4):
        a(f"v_add_u32 v{8+i}, v{8+i}, v{32+i}")
    for i in range(4):
        a(f"v_lshlrev_b32 v{28+i}, 2, v{8+i}")
        a(f"ds_write_b32 v{28+i}, v{4+i} offset:{IDXS}")
    for i in range(4):
        a(f"v_lshlrev_b32 v{8+i}, 4, v{8+i}")
    if o.k1split:
        a("s_waitcnt vmcnt(2)")
        for i in range(4):
            a(f"ds_write_b64 v{8+i}, v[{12+2*i}:{13+2*i}] offset:{PAYS}")
        a("s_waitcnt vmcnt(0)")
        st()
        for i in range(4):
            a(f"ds_write_b64 v{8+i}, v[{20+2*i}:{21+2*i}] offset:{PAYS+8}")
    else:
        for i in range(4):
            a(f"v_add_u32 v{8+i}, {PAYS}, v{8+i}")
        a("s_waitcnt vmcnt(0)")
        st()
        for i in range(4):
            a(f"ds_write2_b64 v{8+i}, v[{12+2*i}:{13+2*i}], v[{20+2*i}:{21+2*i}] offset0:0 offset1:1")
    a("s_mov_b64 exec, vcc")
    a("s_cbranch_execz K1_NOTAB")
    a(f"global_store_dwordx4 v47, v[36:39], s[16:17]{stm}")
    a.label("K1_NOTAB")
    a("s_mov_b64 exec, -1")
    a("v_lshlrev_b32 v1, 4, v0")
    a(f"s_mul_i32 s3, s2, {CS*4}")
    a(f"s_add_u32 s3, s3, {IDX_OFF}")
    a("v_add_u32 v2, s3, v1")
    a(f"s_mul_i32 s3, s2, {CS*16}")
    a(f"s_add_u32 s3, s3, {PAY_OFF}")
    a("v_add_u32 v3, s3, v1")
    a("v_add_u32 v4, 10240, v3")
    a("v_add_u32 v5, 20480, v3")
    a("v_add_u32 v6, 30720, v3")
    if o.mall:
        a(f"s_mul_i32 s3, s2, {XBYTES//NCH}")
        a(f"v_lshl_add_u32 v7, v0, {o.mallsh}, s3")
        a(f"v_cmp_gt_u32 s[24:25], s23, v0") if False else None
        a(f"v_cmp_gt_u32 vcc, {(XBYTES//NCH + (1<<o.mallsh) - 1) >> o.mallsh}, v0")
        a("s_mov_b64 s[24:25], vcc")
    if o.pf:
        sl = o.pf // 32
        a("s_lshr_b32 s3, s2, 3")
        a(f"s_mul_i32 s3, s3, {sl}")
        a(f"v_lshl_add_u32 v9, v0, 7, s3")
        a(f"v_cmp_gt_u32 vcc, {(sl + 127) >> 7}, v0")
        a("s_mov_b64 s[26:27], vcc")
    a("s_waitcnt lgkmcnt(0)")
    a("s_barrier")
    st()
    a(f"ds_read_b128 v[48:51], v1 offset:{IDXS}")
    for j in range(4):
        a(f"ds_read_b128 v[{52+4*j}:{55+4*j}], v1 offset:{PAYS + 10240*j}")
    def touches():
        if o.mall:
            a("s_mov_b64 exec, s[24:25]")
            a("s_cbranch_execz K1_NOMALL")
            a("global_load_dword v8, v7, s[18:19]")
            a.label("K1_NOMALL")
        if o.pf:
            a("s_mov_b64 exec, s[26:27]")
            a("s_cbranch_execz K1_NOPF")
            a("global_load_dword v10, v9, s[18:19]")
            a.label("K1_NOPF")
        a("s_mov_b64 exec, -1")
    if o.touchfirst: touches()
    a("s_waitcnt lgkmcnt(4)")
    a(f"global_store_dwordx4 v2, v[48:51], s[16:17]{stm}")
    for j in range(4):
        a(f"s_waitcnt lgkmcnt({3-j})")
        a(f"global_store_dwordx4 v{3+j}, v[{52+4*j}:{55+4*j}], s[16:17]{stm}")
    if not o.touchfirst: touches()
    st()
    if o.ts:
        a("s_waitcnt vmcnt(0)")
        st()
    st.dump(16, 30)
    a.label("K1_END")
    a("s_endpgm")
    return dict(lds=12288 + 40960, vgpr=72, threads=640)

def gen_k2(a, o):
    NW = o.NW; NT = NW * 64
    NR = -(-NCH // (NW * 4))
    S = o.S
    SLOT = 4096
    RING = NW * SLOT
    BASE = RING - 2176; HIST = RING - 1152; MISC = RING - 128
    AGG = RING; ZERO = AGG + 40960; WOFF = ZERO + 128
    CAP = ((163840 - 640 - WOFF) // 20) // 8 * 8
    CAP = min(CAP, o.capmax)
    POFF = WOFF + CAP * 4
    CONST = POFF + CAP * 16
    LDS = CONST + 640
    assert LDS <= 163840 and POFF % 16 == 0
    assert CAP // 8 // NW + S + 2 <= 64
    assert (NR - NR // 2) * NT <= CAP - 8
    DUMMY = (0x3fff << 9) | ((o.P - 1) * 64 + 39)
    st = Stamps(a, o.ts, 70, 1)
    sX, sCG, sWR, sWO, sOUT, sWS = 4, 8, 10, 12, 14, 16
    sB, sN0, sN1, sWv = 18, 19, 20, 21
    sIDX, sPAY = 22, 24
    sSlow, sWin, sHalf, sMaxc = 26, 27, 28, 29
    sR, sNB, sK, sCur, sLast, sQ, sT0, sT1 = 30, 31, 32, 33, 34, 35, 36, 37
    sXS = 40
    sWS4 = 44
    sSO = 48
    sMask = 51
    sMA, sMB, sNA, sNBm, sTA = 52, 54, 56, 58, 60
    sWOFF, sPOFF = 62, 63
    sAny = 64
    sM0 = 66
    sRM = 66 if not o.ts else 66
    sRM = 102 - 4 * NR
    if o.ts: assert sRM >= 70 + 2 * 8, "stamp regs overlap"
    def mk0(r): return sr(sRM + 2 * r, 2)
    def mk1(r): return sr(sRM + 2 * NR + 2 * r, 2)
    vEnt = 2
    vRb = vEnt + NR
    vPo = vRb + NR
    vW0 = vPo + NR
    vW1 = vW0 + NR
    vRk0 = vW1 + NR
    vRk1 = vRk0 + NR
    vP0 = (vRk1 + NR + 1) // 2 * 2
    vP1 = vP0 + 4 * NR
    vTmp = vP1 + 4 * NR
    vTop = vTmp + 12
    c = max(vTop, 78)
    c = (c + 1) // 2 * 2
    vLane = c; c += 1
    vOffE = c; c += 1
    vOffO = c; c += 1
    vTr = c; c += 4
    vLW = c; c += 1
    vLK = c; c += 1
    vLS = c; c += 1
    vLive = c; c += 1
    vLE = c; c += 1
    vAgg = c; c += 1
    vList = c; c += 1
    c = (c + 1) // 2 * 2
    vCg = c; c += 2
    vWn = c; c += 4
    vWr = c; c += 16
    NV = c
    vX = 2; vAcc = 18; vD = 34; vT = 42; vTm = 46; vTn = 50; vSh = 54; vEa = 58; vKy = 60; vKn = 62
    vDa = 64; vA = 68; vF = 72; vFa = 76
    assert NV <= 512 // (-(-NW // 4)) // 8 * 8, NV

    a(".p2align 8")
    a.label("gather_kernel")
    a(f"s_cmp_ge_u32 s2, {NCH}")
    a("s_cbranch_scc1 K2_END")
    a(f"s_load_dwordx2 {sr(sWS,2)}, s[0:1], 80")
    a(f"s_load_dwordx8 s[8:15], s[0:1], 40")
    a(f"s_load_dwordx2 {sr(sX,2)}, s[0:1], 0")
    a(f"s_and_b32 s{sB}, s2, 7")
    a(f"s_lshl_b32 s{sB}, s{sB}, 5")
    a(f"s_lshr_b32 s3, s2, 3")
    a(f"s_add_u32 s{sB}, s{sB}, s3              ; bucket")
    a(f"v_lshrrev_b32 v1, 6, v0")
    a(f"s_mul_i32 s{sN0}, s{sB}, 625")
    a(f"v_readfirstlane_b32 s{sWv}, v1")
    a(f"s_add_u32 s{sN1}, s{sN0}, 640")
    a(f"s_add_u32 s{sN0}, s{sN0}, 15")
    a(f"s_lshr_b32 s{sN0}, s{sN0}, 4")
    a(f"s_lshr_b32 s{sN1}, s{sN1}, 4")
    a(f"s_mov_b32 s{sSlow}, 0")
    a(f"s_mov_b32 s{sWin}, 0")
    a(f"s_mov_b32 s{sHalf}, 0")
    a(f"v_and_b32 v{vLane}, 63, v0")
    t = vTmp
    a(f"v_mov_b32 v{t}, 0"); a(f"v_mov_b32 v{t+1}, 0"); a(f"v_mov_b32 v{t+2}, 0"); a(f"v_mov_b32 v{t+3}, 0")
    a(f"v_lshlrev_b32 v{t+4}, 4, v0")
    a(f"v_add_u32 v{t+5}, {HIST}, v{t+4}")
    nz = -(-(ZERO + 128 - HIST) // (NT * 16))
    assert HIST + nz * NT * 16 <= CONST
    a(f"v_lshrrev_b32 v1, 4, v0")
    a(f"v_mul_u32_u24 v1, {NR}, v1")
    a(f"s_lshl_b32 s3, s{sB}, 2")
    bias = 4096 if NR > 4 else 0
    if bias: a(f"s_add_u32 s3, s3, {bias}")
    a(f"v_lshl_add_u32 v{t+6}, v1, 10, s3")
    a("s_waitcnt lgkmcnt(0)")
    st()
    a(f"s_cmp_lg_u32 s{sWv}, 0")
    a("s_cbranch_scc1 K2_NOCONST")
    a("s_mov_b64 exec, 0xff")
    a(f"global_load_dwordx4 {vr(vP0,4)}, v{t+4}, {sr(sCG,2)}")
    a("s_mov_b64 exec, 0xffffffff")
    a(f"global_load_dwordx4 {vr(vP0+4,4)}, v{t+4}, {sr(sWR,2)}")
    a("s_mov_b64 exec, -1")
    a.label("K2_NOCONST")
    for r in range(NR):
        a(f"global_load_dword v{vEnt+r}, v{t+6}, {sr(sWS,2)} offset:{r*1024 - bias}")
    for z in range(nz):
        a(f"ds_write_b128 v{t+5}, {vr(t,4)} offset:{z*NT*16}")
    a(f"s_add_u32 s{sIDX}, s{sWS}, {IDX_OFF}")
    a(f"s_addc_u32 s{sIDX+1}, s{sWS+1}, 0")
    a(f"s_add_u32 s{sPAY}, s{sWS}, {PAY_OFF}")
    a(f"s_addc_u32 s{sPAY+1}, s{sWS+1}, 0")
    a(f"s_sub_u32 s{sXS}, s{sX}, 3072")
    a(f"s_subb_u32 s{sXS+1}, s{sX+1}, 0")
    a(f"s_mov_b32 s{sXS+2}, {XBYTES + 3072}")
    a(f"s_mov_b32 s{sXS+3}, 0x20000")
    a(f"s_mov_b32 s{sWS4}, s{sWO}")
    a(f"s_mov_b32 s{sWS4+1}, s{sWO+1}")
    a(f"s_mov_b32 s{sWS4+2}, 8192")
    a(f"s_mov_b32 s{sWS4+3}, 0x20000")
    a(f"s_movk_i32 s{sSO}, 3072"); a(f"s_movk_i32 s{sSO+1}, 2048"); a(f"s_movk_i32 s{sSO+2}, 1024")
    a(f"s_mov_b32 s{sMask}, 0xfffffe00")
    a(f"s_mov_b32 s{sWOFF}, {WOFF}")
    a(f"s_mov_b32 s{sPOFF}, {POFF}")
    a(f"s_lshl_b32 s3, s{sWv}, 12")
    a(f"s_mov_b32 m0, s3")
    L = vLane
    u, f, x_ = t + 7, t + 8, t + 9
    a(f"v_and_b32 v{x_}, 31, v{L}")
    a(f"v_lshlrev_b32 v{x_}, 4, v{x_}           ; unit*16")
    a(f"v_bfe_u32 v{f}, v{L}, 4, 1              ; u>>1")
    a(f"v_lshlrev_b32 v{f}, 5, v{f}")
    a(f"v_xor_b32 v{vOffE}, v{x_}, v{f}")
    a(f"v_xor_b32 v{vOffO}, 64, v{vOffE}")
    a(f"v_lshrrev_b32 v{x_}, 4, v{L}")
    a(f"v_lshl_add_u32 v{x_}, v{x_}, 10, s3")
    a(f"v_bfe_u32 v{u}, v{L}, 2, 2")
    a(f"v_lshl_add_u32 v{x_}, v{u}, 7, v{x_}")
    a(f"v_and_b32 v{u}, 3, v{L}")
    a(f"v_lshl_add_u32 v{x_}, v{u}, 3, v{x_}")
    a(f"v_bfe_u32 v{f}, v{L}, 3, 2")
    a(f"v_lshl_add_u32 v{vTr}, v{f}, 5, v{x_}")
    for tt in range(1, 4):
        a(f"v_xor_b32 v{vTr+tt}, {32*tt}, v{vTr}")
    a(f"v_lshrrev_b32 v{x_}, 5, v{L}")
    a(f"v_lshl_add_u32 v{vLW}, v{x_}, 4, s{sWOFF}")
    a(f"v_lshrrev_b32 v{x_}, 4, v{L}            ; g")
    a(f"v_lshl_add_u32 v{vLK}, v{x_}, 2, s{sWOFF}")
    a(f"v_lshl_add_u32 v{vLE}, v{x_}, 4, s{sPOFF}")
    a(f"v_lshl_add_u32 v{vLE}, v{u}, 1, v{vLE}")
    a(f"v_add_u32 v{vLE}, 8, v{vLE}")
    a(f"v_cmp_eq_u32 vcc, v{u}, v{x_}")
    a(f"v_bfe_u32 v{f}, v{L}, 2, 2")
    a(f"v_lshl_add_u32 v{f}, v{f}, 4, s{sPOFF}")
    a(f"v_mov_b32 v{vLS}, {ZERO}")
    a(f"v_cndmask_b32 v{vLS}, v{vLS}, v{f}, vcc")
    a(f"v_cndmask_b32 v{vLive}, 0, 16, vcc")
    a(f"v_lshlrev_b32 v{vAgg}, 2, v{L}")
    a(f"v_add_u32 v{vAgg}, {AGG}, v{vAgg}")
    a(f"s_cmp_lg_u32 s{sWv}, 0")
    a("s_cbranch_scc1 K2_NOCONST2")
    a(f"v_add_u32 v{t+4}, {CONST}, v{t+4}")
    a(f"s_waitcnt vmcnt({NR})")
    a("s_mov_b64 exec, 0xff")
    a(f"ds_write_b128 v{t+4}, {vr(vP0,4)}")
    a("s_mov_b64 exec, 0xffffffff")
    a(f"ds_write_b128 v{t+4}, {vr(vP0+4,4)} offset:128")
    a("s_mov_b64 exec, -1")
    a.label("K2_NOCONST2")
    a("s_branch K2_BATCH0")

    a.label("K2_BATCH")
    a(f"v_lshrrev_b32 v1, 4, v0")
    a(f"v_mul_u32_u24 v1, {NR}, v1")
    a(f"s_lshl_b32 s3, s{sB}, 2")
    if bias: a(f"s_add_u32 s3, s3, {bias}")
    a(f"v_lshl_add_u32 v{t+6}, v1, 10, s3")
    for r in range(NR):
        a(f"global_load_dword v{vEnt+r}, v{t+6}, {sr(sWS,2)} offset:{r*1024 - bias}")
    a(f"v_mov_b32 v{t}, 0")
    a(f"v_and_b32 v{t+1}, 255, v0")
    a(f"v_lshlrev_b32 v{t+1}, 2, v{t+1}")
    a(f"ds_write_b32 v{t+1}, v{t} offset:{HIST}")

    a.label("K2_BATCH0")
    thL, thH, th1, l16 = t, t + 1, t + 2, t + 3
    a(f"v_and_b32 v{l16}, 15, v0")
    a(f"s_lshl_b32 s{sT0}, s{sWin}, 4           ; 16*window")
    a(f"s_cmp_eq_u32 s{sHalf}, 2")
    a(f"s_cselect_b32 s{sT1}, 0x10000, s{sT0}")
    a(f"v_add_u32 v{thL}, s{sT1}, v{l16}")
    a(f"s_cmp_eq_u32 s{sHalf}, 1")
    a(f"s_cselect_b32 s{sT1}, 0x10000, s{sT0}")
    a(f"v_add_u32 v{thH}, s{sT1}, v{l16}")
    a(f"s_cmp_eq_u32 s{sSlow}, 0")
    a(f"s_cselect_b32 s{sT1}, 16, 0x10000")
    a(f"v_add_u32 v{th1}, s{sT1}, v{l16}")
    a(f"v_mul_u32_u24 v{vRb}, {CS}, v1")
    a(f"v_add3_u32 v{vRb}, v{vRb}, v{l16}, s{sT0}")
    for r in range(1, NR):
        a(f"v_add_u32 v{vRb+r}, {CS*r}, v{vRb}")
    if NR * NW * 4 != NCH:
        for r in range(NR):
            a(f"v_add_u32 v{vPo+r}, {r}, v1")
    a("s_waitcnt lgkmcnt(0)")
    a("s_barrier")
    a("s_waitcnt vmcnt(0)")
    st()
    if NR * NW * 4 != NCH:
        for r in range(NR):
            a(f"v_cmp_gt_u32 vcc, {NCH}, v{vPo+r}")
            a("s_nop 1")
            a(f"v_cndmask_b32 v{vEnt+r}, 0, v{vEnt+r}, vcc")
    for r in range(NR):
        a(f"v_add_u32_sdwa v{vRb+r}, v{vEnt+r}, v{vRb+r} dst_sel:DWORD dst_unused:UNUSED_PAD src0_sel:WORD_0 src1_sel:DWORD")
        a(f"v_cmp_gt_u32_sdwa {mk0(r)}, v{vEnt+r}, v{thL if r < NR//2 else thH} src0_sel:WORD_1 src1_sel:DWORD")
        a(f"v_lshlrev_b32 v{vPo+r}, 4, v{vRb+r}")
        a(f"v_lshlrev_b32 v{vRb+r}, 2, v{vRb+r}")
        a(f"s_mov_b64 exec, {mk0(r)}")
        a(f"global_load_dword v{vW0+r}, v{vRb+r}, {sr(sIDX,2)}")
        a("s_mov_b64 exec, -1")
    for r in range(NR):
        a(f"v_cmp_gt_u32_sdwa {mk1(r)}, v{vEnt+r}, v{th1} src0_sel:WORD_1 src1_sel:DWORD")
    a(f"s_or_b64 {sr(sAny,2)}, {mk1(0)}, {mk1(1)}")
    for r in range(2, NR):
        a(f"s_or_b64 {sr(sAny,2)}, {sr(sAny,2)}, {mk1(r)}")
    a("s_cbranch_scc0 K2_NOW1A")
    for r in range(NR):
        a(f"s_mov_b64 exec, {mk1(r)}")
        a(f"s_cbranch_execz K2_W1A_{r}")
        a(f"global_load_dword v{vW1+r}, v{vRb+r}, {sr(sIDX,2)} offset:64")
        a(f"global_load_dwordx4 {vr(vP1+4*r,4)}, v{vPo+r}, {sr(sPAY,2)} offset:256")
        a.label(f"K2_W1A_{r}")
    a("s_mov_b64 exec, -1")
    a(f"v_max_u32 v{t+4}, v{vEnt}, v{vEnt+1}")
    for r in range(2, NR):
        a(f"v_max_u32 v{t+4}, v{t+4}, v{vEnt+r}")
    a(f"v_lshrrev_b32 v{t+4}, 16, v{t+4}")
    a(f"v_cmp_lt_u32 vcc, 32, v{t+4}")
    a(f"v_mov_b32 v{t+5}, {MISC}")
    a("s_mov_b64 exec, vcc")
    a("s_cbranch_execz K2_NOW1A")
    a(f"ds_max_u32 v{t+5}, v{t+4}")
    a.label("K2_NOW1A")
    for r in range(NR):
        a(f"s_mov_b64 exec, {mk0(r)}")
        a(f"global_load_dwordx4 {vr(vP0+4*r,4)}, v{vPo+r}, {sr(sPAY,2)}")
    a("s_mov_b64 exec, -1")
    one, two = t + 4, t + 5
    a(f"v_mov_b32 v{one}, 1")
    a(f"v_mov_b32 v{two}, 2")
    a(f"v_lshlrev_b32 v{t+6}, 4, v{vLane}")
    a(f"v_mov_b32 v{t+7}, {MISC}")
    a(f"s_waitcnt vmcnt({NR})")
    st()
    for r in range(NR):
        a(f"s_mov_b64 exec, {mk0(r)}")
        a(f"v_lshlrev_b32_sdwa v{vRb+r}, v{two}, v{vW0+r} dst_sel:DWORD dst_unused:UNUSED_PAD src0_sel:DWORD src1_sel:BYTE_0")
        a(f"ds_add_rtn_u32 v{vRk0+r}, v{vRb+r}, v{one} offset:{HIST}")
    a(f"s_cmp_eq_u64 {sr(sAny,2)}, 0")
    a("s_cbranch_scc1 K2_NOW1B")
    for r in range(NR):
        a(f"s_mov_b64 exec, {mk1(r)}")
        a(f"v_lshlrev_b32_sdwa v{vPo+r}, v{two}, v{vW1+r} dst_sel:DWORD dst_unused:UNUSED_PAD src0_sel:DWORD src1_sel:BYTE_0")
        a(f"ds_add_rtn_u32 v{vRk1+r}, v{vPo+r}, v{one} offset:{HIST}")
    a.label("K2_NOW1B")
    a("s_mov_b64 exec, -1")
    a("s_waitcnt lgkmcnt(0)")
    a("s_barrier")
    h = t
    a(f"ds_read_b128 {vr(h,4)}, v{t+6} offset:{HIST}")
    a(f"ds_read_b32 v{t+7}, v{t+7}")
    b = t + 8
    a("s_waitcnt lgkmcnt(0)")
    a(f"v_add_u32 v{b+2}, v{h}, v{h+1}")
    a(f"v_add_u32 v{b+3}, v{b+2}, v{h+2}")
    a(f"v_add_u32 v{h+3}, v{b+3}, v{h+3}")
    a(f"v_mov_b32 v{h+1}, v{h+3}")
    dpp_scan(a, f"v{h+1}")
    a(f"v_sub_u32 v{b}, v{h+1}, v{h+3}")
    a(f"v_add_u32 v{b+1}, v{b}, v{h}")
    a(f"v_add_u32 v{b+2}, v{b}, v{b+2}")
    a(f"v_add_u32 v{b+3}, v{b}, v{b+3}")
    a(f"ds_write_b128 v{t+6}, {vr(b,4)} offset:{BASE}")
    a(f"v_readlane_b32 s{sR}, v{h+1}, 63")
    a(f"v_readfirstlane_b32 s{sT0}, v{t+7}")
    a(f"s_cmp_lg_u32 s{sSlow}, 0")
    a("s_cbranch_scc1 K2_FEAS")
    a(f"s_cmp_gt_u32 s{sR}, {CAP-8}")
    a("s_cbranch_scc1 K2_GOSLOW")
    a(f"s_cmp_lg_u32 s{sT0}, 0")
    a("s_cbranch_scc1 K2_GOSLOW")
    a.label("K2_FEAS")
    a("s_waitcnt lgkmcnt(0)")
    for r in range(NR):
        a(f"s_mov_b64 exec, {mk0(r)}")
        a(f"ds_read_b32 v{vRb+r}, v{vRb+r} offset:{BASE}")
    a(f"s_cmp_eq_u64 {sr(sAny,2)}, 0")
    a("s_cbranch_scc1 K2_NOW1C")
    for r in range(NR):
        a(f"s_mov_b64 exec, {mk1(r)}")
        a(f"ds_read_b32 v{vPo+r}, v{vPo+r} offset:{BASE}")
    a("s_waitcnt lgkmcnt(0)")
    for r in range(NR):
        a(f"s_mov_b64 exec, {mk1(r)}")
        a(f"v_add_u32 v{vPo+r}, v{vPo+r}, v{vRk1+r}")
        a(f"v_lshl_add_u32 v{vRk1+r}, v{vPo+r}, 2, s{sWOFF}")
        a(f"v_lshl_add_u32 v{vPo+r}, v{vPo+r}, 4, s{sPOFF}")
        a(f"ds_write_b32 v{vRk1+r}, v{vW1+r}")
        a(f"ds_write_b128 v{vPo+r}, {vr(vP1+4*r,4)}")
    a.label("K2_NOW1C")
    a("s_mov_b64 exec, -1")
    D = S * NW
    def divD(dst, src):
        if D & (D - 1) == 0:
            a(f"s_lshr_b32 s{dst}, s{src}, {D.bit_length()-1}")
        else:
            a(f"s_mul_hi_u32 s{dst}, s{src}, {-(-(1<<32)//D)}")
    sBt, sJ, sEn, sSt = sK, sCur, sLast, sQ
    a(f"s_add_u32 s{sBt}, s{sR}, 7")
    a(f"s_lshr_b32 s{sBt}, s{sBt}, 3")
    a(f"s_mul_i32 s{sJ}, s{sWv}, s{sBt}")
    divD(sSt, sJ)
    a(f"s_add_u32 s{sT0}, s{sJ}, s{sBt}")
    divD(sEn, sT0)
    a(f"v_add_u32 v{vList}, s{sSt}, v{vLane}")
    a(f"s_sub_u32 s{sNB}, s{sEn}, s{sSt}")
    for s_ in range(1, S):
        a(f"s_mul_i32 s{sT0}, s{sBt}, {NW}")
        a(f"s_add_u32 s{sJ}, s{sJ}, s{sT0}")
        divD(sSt, sJ)
        a(f"s_sub_u32 s{sT1}, s{sSt}, s{sEn}")
        a(f"s_lshl_b64 exec, -1, s{sNB}")
        a(f"v_add_u32 v{vList}, s{sT1}, v{vList}")
        a(f"s_add_u32 s{sT0}, s{sJ}, s{sBt}")
        divD(sEn, sT0)
        a(f"s_add_u32 s{sNB}, s{sNB}, s{sEn}")
        a(f"s_sub_u32 s{sNB}, s{sNB}, s{sSt}")
    a(f"s_lshl_b64 exec, -1, s{sNB}")
    a(f"v_mov_b32 v{vList}, 0")
    a("s_mov_b64 exec, -1")
    a(f"v_lshlrev_b32 v{vList}, 3, v{vList}")
    a(f"v_add_u32 v{t}, s{sR}, v{vLane}")
    a(f"v_lshl_add_u32 v{t+1}, v{t}, 2, s{sWOFF}")
    a(f"v_lshl_add_u32 v{t}, v{t}, 4, s{sPOFF}")
    a(f"v_mov_b32 v{t+2}, {DUMMY}")
    for i in range(4): a(f"v_mov_b32 v{t+4+i}, 0")
    a("s_waitcnt lgkmcnt(0)")
    for r in range(NR):
        a(f"s_mov_b64 exec, {mk0(r)}")
        a(f"v_add_u32 v{vRb+r}, v{vRb+r}, v{vRk0+r}")
        a(f"v_lshl_add_u32 v{vRk0+r}, v{vRb+r}, 2, s{sWOFF}")
        a(f"ds_write_b32 v{vRk0+r}, v{vW0+r}")
        a(f"v_lshl_add_u32 v{vRb+r}, v{vRb+r}, 4, s{sPOFF}")
    a("s_mov_b64 exec, 0xff")
    a(f"ds_write_b32 v{t+1}, v{t+2}")
    a(f"ds_write_b128 v{t}, {vr(t+4,4)}")
    a("s_mov_b64 exec, -1")
    a(f"v_readlane_b32 s{sQ}, v{vList}, 0")
    a("s_nop 1")
    a(f"v_lshl_add_u32 v{t}, s{sQ}, 2, v{vLW}")
    a("s_waitcnt lgkmcnt(0)")
    a("s_barrier")
    st()
    a(f"ds_read_b128 {vr(vWn,4)}, v{t}")
    a(f"s_cmp_eq_u32 s{sNB}, 0")
    a("s_cbranch_scc1 K2_NODMA0")
    a("s_waitcnt lgkmcnt(0)")
    def dma(src):
        for i in range(4):
            so = f"s{sSO+i}" if i < 3 else "0"
            a(f"buffer_load_dwordx4 v{src+i}, {sr(sXS,4)}, {so} offen offset:{1024*i} lds")
    for i in range(4):
        a(f"v_and_or_b32 v{t+i}, v{vWn+i}, s{sMask}, v{vOffE if i%2==0 else vOffO}")
    dma(t)
    for r in range(NR):
        a(f"s_waitcnt vmcnt({4 + NR - 1 - r})")
        a(f"s_mov_b64 exec, {mk0(r)}")
        a(f"ds_write_b128 v{vRb+r}, {vr(vP0+4*r,4)}")
    a("s_branch K2_PAYDONE")
    a.label("K2_NODMA0")
    a("s_waitcnt vmcnt(0)")
    for r in range(NR):
        a(f"s_mov_b64 exec, {mk0(r)}")
        a(f"ds_write_b128 v{vRb+r}, {vr(vP0+4*r,4)}")
    a.label("K2_PAYDONE")
    a("s_mov_b64 exec, -1")
    a(f"v_lshrrev_b32 v{t}, 4, v{vLane}")
    a(f"v_lshlrev_b32 v{t}, 5, v{t}")
    a(f"v_bfe_u32 v{t+1}, v{vLane}, 2, 2")
    a(f"v_lshl_add_u32 v{t}, v{t+1}, 1, v{t}")
    a(f"v_add_u32 v{t}, {CONST}, v{t}")
    for v_ in range(4):
        a(f"ds_read_u16 v{t+4+v_}, v{t} offset:{8*v_}")
    a(f"v_lshlrev_b32 v{t+1}, 7, v{t+1}")
    a(f"v_and_b32 v{t+2}, 3, v{vLane}")
    a(f"v_lshl_add_u32 v{t+1}, v{t+2}, 3, v{t+1}")
    a(f"v_add_u32 v{t+1}, {CONST+128}, v{t+1}")
    for tt in range(4):
        a(f"ds_read_b64_tr_b16 {vr(vWr+4*tt+2,2)}, v{t+1} offset:{32*tt}")
    a("s_waitcnt lgkmcnt(0)")
    a("s_barrier")
    st()
    a(f"v_lshl_or_b32 v{vCg}, v{t+5}, 16, v{t+4}")
    a(f"v_lshl_or_b32 v{vCg+1}, v{t+7}, 16, v{t+6}")
    def lds_next(first):
        a(f"ds_read2_b64 {vr(vSh,4)}, v{vA} offset0:0 offset1:8")
        a(f"ds_read_u16_d16_hi v{vEa}, v{vA+1}")
        a(f"ds_read_u16_d16_hi v{vEa+1}, v{vA+1} offset:64")
        a(f"ds_read2_b32 {vr(vKn,2)}, v{vA+2} offset0:0 offset1:4")
        a(f"ds_read_b128 {vr(vWn,4)}, v{vA+3}")
    def lds_addr():
        a(f"v_mad_u32_u24 v{vA}, v{vLive}, s{sQ}, v{vLS}")
        a(f"v_lshl_add_u32 v{vA+1}, s{sQ}, 4, v{vLE}")
        a(f"v_lshl_add_u32 v{vA+2}, s{sQ}, 2, v{vLK}")
        a(f"v_lshl_add_u32 v{vA+3}, s{sT0}, 2, v{vLW}")
    a(f"v_readlane_b32 s{sT0}, v{vList}, 1")
    a(f"v_mov_b32 v{vEa}, 0")
    a(f"v_mov_b32 v{vEa+1}, 0")
    lds_addr()
    lds_next(True)
    for tt in range(4):
        w = vWr + 4 * tt
        a(f"v_lshlrev_b32 v{w}, 16, v{w+2}")
        a(f"v_and_b32 v{w+1}, 0xffff0000, v{w+2}")
        a(f"v_lshlrev_b32 v{w+2}, 16, v{w+3}")
        a(f"v_and_b32 v{w+3}, 0xffff0000, v{w+3}")
    for i in range(16):
        a(f"v_mov_b32 v{vAcc+i}, 0")
    a(f"s_mov_b32 s{sCur}, 0")
    a(f"s_mov_b32 s{sK}, 1")
    a(f"s_cmp_eq_u32 s{sNB}, 0")
    a("s_cbranch_scc1 K2_EMPTY")

    def mains(T, zero):
        for tt in range(4):
            c_ = "0" if zero else vr(vAcc + 4 * tt, 4)
            a(f"v_mfma_f32_16x16x32_bf16 {vr(vAcc+4*tt,4)}, {vr(T,4)}, {vr(vX+4*tt,4)}, {c_}")
    def flush(pad):
        a(f"s_and_b32 s{sT1}, s{sCur}, 63")
        a(f"s_lshl_b32 s{sT1}, s{sT1}, 10")
        a(f"v_add_u32 v{vFa}, s{sT1}, v{vAgg}")
        if pad: a(f"s_nop {pad-1}")
        for tt in range(4):
            a(f"v_mul_f32 v{vF+tt}, v{vAcc+4*tt}, v{vWr+4*tt}")
            for d in range(1, 4):
                a(f"v_fmac_f32 v{vF+tt}, v{vAcc+4*tt+d}, v{vWr+4*tt+d}")
            a(f"ds_add_f32 v{vFa}, v{vF+tt} offset:{256*tt}")
    def cmpk(mA, mB, op, s):
        a(f"v_cmp_{op}_u32_sdwa {sr(mA,2)}, v{vKy}, s{s} src0_sel:BYTE_0 src1_sel:DWORD")
        a(f"v_cmp_{op}_u32_sdwa {sr(mB,2)}, v{vKy+1}, s{s} src0_sel:BYTE_0 src1_sel:DWORD")
    def maskT(dst, mA, mB):
        for i in range(4):
            a(f"v_cndmask_b32 v{dst+i}, 0, v{vT+i}, {sr(mA if i < 2 else mB,2)}")

    a(".p2align 6") if o.align else None
    a.label("K2_LOOP")
    a("s_waitcnt lgkmcnt(0)")
    a(f"v_mfma_f32_16x16x16_bf16 {vr(vD,4)}, {vr(vSh,2)}, {vr(vCg,2)}, 0")
    a(f"v_mfma_f32_16x16x16_bf16 {vr(vD+4,4)}, {vr(vSh+2,2)}, {vr(vCg,2)}, 0")
    a(f"s_add_u32 s{sT1}, s{sK}, 1")
    a(f"v_readlane_b32 s{sQ}, v{vList}, s{sK}")
    a(f"v_readlane_b32 s{sT0}, v{vList}, s{sT1}")
    a(f"v_readlane_b32 s{sLast}, v{vKn+1}, 63")
    for i in range(4):
        a(f"v_and_or_b32 v{vDa+i}, v{vWn+i}, s{sMask}, v{vOffE if i%2==0 else vOffO}")
    a(f"v_mov_b32 v{vKy}, v{vKn}")
    a(f"v_mov_b32 v{vKy+1}, v{vKn+1}")
    for i in range(8):
        a(f"v_mul_f32 v{vD+i}, v{vD+i}, v{vEa + i//4}")
    for i in range(4):
        a(f"v_cvt_pk_bf16_f32 v{vT+i}, v{vD+2*i}, v{vD+2*i+1}")
    lds_addr()
    a(f"s_and_b32 s{sLast}, s{sLast}, 0xff")
    a("s_waitcnt vmcnt(0)")
    for tt in range(4):
        a(f"ds_read_b64_tr_b16 {vr(vX+4*tt,2)}, v{vTr+tt}")
        a(f"ds_read_b64_tr_b16 {vr(vX+4*tt+2,2)}, v{vTr+tt} offset:512")
    a(f"s_cmp_ge_u32 s{sK}, s{sNB}")
    a("s_cbranch_scc1 K2_LASTBLK")
    a("s_waitcnt lgkmcnt(0)")
    dma(vDa)
    a.label("K2_AFTERDMA")
    lds_next(False)
    a(f"s_cmp_eq_u32 s{sLast}, s{sCur}")
    a("s_cbranch_scc0 K2_BOUND")
    mains(vT, False)
    a.label("K2_NEXT")
    a(f"s_add_u32 s{sK}, s{sK}, 1")
    a(f"s_cmp_le_u32 s{sK}, s{sNB}")
    a("s_cbranch_scc1 K2_LOOP")
    flush(3)
    a("s_branch K2_DONE")

    a.label("K2_LASTBLK")
    a(f"v_lshlrev_b32 v{vDa}, 4, v0")
    a("s_waitcnt lgkmcnt(0)")
    a(f"buffer_load_dwordx4 v{vDa}, {sr(sWS4,4)}, 0 offen lds")
    a("s_branch K2_AFTERDMA")

    a.label("K2_BOUND")
    cmpk(sMA, sMB, "eq", sCur)
    cmpk(sNA, sNBm, "eq", sLast)
    a(f"s_cmp_eq_u64 {sr(sMA,2)}, 0")
    a("s_cbranch_scc1 K2_B_FLUSH")
    maskT(vTm, sMA, sMB)
    a("s_nop 1")
    mains(vTm, False)
    a.label("K2_B_FLUSH")
    maskT(vTn, sNA, sNBm)
    a(f"s_or_b64 {sr(sTA,2)}, {sr(sMA,2)}, {sr(sNA,2)}")
    a(f"s_or_b64 {sr(sMB,2)}, {sr(sMB,2)}, {sr(sNBm,2)}")
    a(f"s_and_b64 {sr(sTA,2)}, {sr(sTA,2)}, {sr(sMB,2)}")
    flush(0)
    a(f"s_cmp_eq_u64 {sr(sTA,2)}, -1")
    a("s_cbranch_scc0 K2_B_MULTI")
    a.label("K2_B_LAST")
    mains(vTn, True)
    a(f"s_mov_b32 s{sCur}, s{sLast}")
    a("s_branch K2_NEXT")
    a.label("K2_B_MULTI")
    cmpk(sMA, sMB, "gt", sCur)
    a(f"s_ff1_i32_b64 s{sT1}, {sr(sMA,2)}")
    a(f"s_ff1_i32_b64 s3, {sr(sMB,2)}")
    a(f"v_readlane_b32 s{sCur}, v{vKy}, s{sT1}")
    a(f"v_readlane_b32 s3, v{vKy+1}, s3")
    a(f"s_cmp_eq_u64 {sr(sMA,2)}, 0")
    a(f"s_cselect_b32 s{sCur}, s3, s{sCur}")
    a(f"s_and_b32 s{sCur}, s{sCur}, 0xff")
    a(f"s_cmp_eq_u32 s{sCur}, s{sLast}")
    a("s_cbranch_scc1 K2_B_LAST")
    cmpk(sMA, sMB, "eq", sCur)
    a("s_nop 0")
    maskT(vTm, sMA, sMB)
    a("s_nop 1")
    mains(vTm, True)
    flush(2)
    a("s_branch K2_B_MULTI")

    a.label("K2_GOSLOW")
    a(f"s_max_u32 s{sMaxc}, s{sT0}, 32")
    a(f"s_mov_b32 s{sSlow}, 1")
    a(f"s_mov_b32 s{sHalf}, 1")
    a("s_waitcnt vmcnt(0) lgkmcnt(0)")
    a("s_barrier")
    a("s_branch K2_BATCH")

    a.label("K2_EMPTY")
    a(f"v_lshlrev_b32 v{vDa}, 4, v0")
    a(f"buffer_load_dwordx4 v{vDa}, {sr(sWS4,4)}, 0 offen lds")
    a.label("K2_DONE")
    st()
    a("s_waitcnt vmcnt(0) lgkmcnt(0)")
    a("s_barrier")
    a(f"s_cmp_eq_u32 s{sSlow}, 0")
    a("s_cbranch_scc1 K2_EPI")
    a(f"s_add_u32 s{sHalf}, s{sHalf}, 1")
    a(f"s_cmp_le_u32 s{sHalf}, 2")
    a("s_cbranch_scc1 K2_BATCH")
    a(f"s_mov_b32 s{sHalf}, 1")
    a(f"s_add_u32 s{sWin}, s{sWin}, 1")
    a(f"s_lshl_b32 s{sT0}, s{sWin}, 4")
    a(f"s_cmp_lt_u32 s{sT0}, s{sMaxc}")
    a("s_cbranch_scc1 K2_BATCH")

    a.label("K2_EPI")
    st()
    a(f"s_mov_b32 s{sK}, s{sWv}")
    a(f"s_cmp_ge_u32 s{sK}, 10")
    a("s_cbranch_scc1 K2_FIN")
    eA = 2
    eB = 34
    eC = 50
    eD = 58
    e = 74
    a(f"v_lshrrev_b32 v{e}, 4, v{vLane}          ; g")
    a(f"v_bfe_u32 v{e+1}, v{vLane}, 2, 2")
    a(f"v_and_b32 v{e+2}, 3, v{vLane}            ; cq / m")
    a(f"v_lshlrev_b32 v{e+3}, 12, v{e}")
    a(f"v_lshl_add_u32 v{e+3}, v{e+1}, 7, v{e+3}")
    a(f"v_lshl_add_u32 v{e+3}, v{e+2}, 4, v{e+3}")
    for tp in range(4):
        for s_ in range(2):
            for kp in range(2):
                off = s_ * 4 * SLOT + kp * 512 + (tp >> 1) * 64 + (tp & 1) * 8
                a(f"ds_read_b64_tr_b16 {vr(eA + (tp*2+s_)*4 + 2*kp, 2)}, v{e+3} offset:{off}")
    a(f"v_lshrrev_b32 v{e+3}, 1, v{e}")
    a(f"v_lshlrev_b32 v{e+3}, 8, v{e+3}")
    a(f"v_lshl_add_u32 v{e+3}, v{e+1}, 10, v{e+3}")
    a(f"v_lshl_add_u32 v{e+3}, v{e+2}, 6, v{e+3}")
    a(f"v_and_b32 v1, 1, v{e}")
    a(f"v_lshl_add_u32 v{e+3}, v1, 5, v{e+3}")
    a(f"v_and_b32 v1, 15, v{vLane}")
    a(f"v_lshlrev_b32 v1, 7, v1")
    a(f"v_lshl_add_u32 v1, v{e}, 4, v1")
    a.label("K2_EPILOOP")
    a(f"s_lshl_b32 s3, s{sK}, 12")
    a(f"s_add_u32 s3, s3, {AGG}")
    a(f"v_add_u32 v{e}, s3, v{e+3}")
    for s_ in range(2):
        a(f"ds_read_b128 {vr(eB+8*s_,4)}, v{e} offset:{512*s_}")
        a(f"ds_read_b128 {vr(eB+8*s_+4,4)}, v{e} offset:{512*s_+16}")
    a(f"s_lshl_b32 s3, s{sK}, 2")
    a(f"s_add_u32 s3, s3, s{sN0}")
    a(f"v_add_u32 v{e}, s3, v{e+1}")
    a(f"v_cmp_gt_u32 vcc, s{sN1}, v{e}")
    a(f"s_lshl_b32 s3, s3, 9")
    a(f"v_add_u32 v{e}, s3, v1")
    a("s_waitcnt lgkmcnt(0)")
    for i in range(8):
        a(f"v_cvt_pk_bf16_f32 v{eC+i}, v{eB+2*i}, v{eB+2*i+1}")
    a("s_nop 1")
    for s_ in range(2):
        for tp in range(4):
            c_ = "0" if s_ == 0 else vr(eD + 4 * tp, 4)
            a(f"v_mfma_f32_16x16x32_bf16 {vr(eD+4*tp,4)}, {vr(eA+(tp*2+s_)*4,4)}, {vr(eC+4*s_,4)}, {c_}")
    a("s_nop 4")
    for i in range(8):
        a(f"v_cvt_pk_bf16_f32 v{eB+i}, v{eD+2*i}, v{eD+2*i+1}")
        if i < 6 and i % 2 == 1 and False: pass
    stm = {"plain": "", "nt": " nt", "sc1": " sc1"}[o.k2st]
    a("s_mov_b64 exec, vcc")
    a(f"global_store_dwordx4 v{e}, {vr(eB,4)}, {sr(sOUT,2)}{stm}")
    a(f"global_store_dwordx4 v{e}, {vr(eB+4,4)}, {sr(sOUT,2)} offset:64{stm}")
    a("s_mov_b64 exec, -1")
    if NW < 10:
        a(f"s_add_u32 s{sK}, s{sK}, {NW}")
        a(f"s_cmp_lt_u32 s{sK}, 10")
        a("s_cbranch_scc1 K2_EPILOOP")
    a.label("K2_FIN")
    if o.ts:
        a("s_waitcnt vmcnt(0)")
    st()
    st.dump(sWS, 2)
    a.label("K2_END")
    a("s_endpgm")
    return dict(lds=LDS, vgpr=NV, threads=NT, cap=CAP)

def kd(name, vgpr):
    v = (vgpr + 7) // 8 * 8
    return f""".amdhsa_kernel {name}
  .amdhsa_next_free_vgpr {v}
  .amdhsa_next_free_sgpr 102
  .amdhsa_accum_offset {v}
  .amdhsa_group_segment_fixed_size 0
  .amdhsa_kernarg_size 88
  .amdhsa_user_sgpr_count 2
  .amdhsa_user_sgpr_kernarg_segment_ptr 1
  .amdhsa_system_sgpr_workgroup_id_x 1
  .amdhsa_float_denorm_mode_32 3
.end_amdhsa_kernel
"""

def main():
    p = argparse.ArgumentParser()
    p.add_argument("-o", default="out.s")
    p.add_argument("--NW", type=int, default=16)
    p.add_argument("--P", type=int, default=2)
    p.add_argument("--S", type=int, default=2)
    p.add_argument("--ts", type=int, default=0)
    p.add_argument("--k1nt", type=int, default=1)
    p.add_argument("--k1st", default="plain")
    p.add_argument("--k2st", default="plain")
    p.add_argument("--k1split", type=int, default=0)
    p.add_argument("--mall", type=int, default=1)
    p.add_argument("--mallsh", type=int, default=7)
    p.add_argument("--pf", type=int, default=0)
    p.add_argument("--touchfirst", type=int, default=1)
    p.add_argument("--align", type=int, default=0)
    p.add_argument("--capmax", type=int, default=4000)
    o = p.parse_args()
    a = Asm()
    i1 = gen_k1(a, o)
    i2 = gen_k2(a, o)
    body = a.text()
    n = check(body)
    out = HDR
    out += f"; @launch kernel=bucket_kernel grid=({NCH},1,1) block=({i1['threads']},1,1) lds={i1['lds']}\n"
    out += f"; @launch kernel=gather_kernel grid=({NCH},1,1) block=({i2['threads']},1,1) lds={i2['lds']}\n"
    out += '.amdgcn_target "amdgcn-amd-amdhsa--gfx950"\n.text\n'
    out += ".globl bucket_kernel\n.type bucket_kernel,@function\n.globl gather_kernel\n.type gather_kernel,@function\n"
    out += body
    out += '.section .rodata,"a"\n.p2align 6\n' + kd("bucket_kernel", i1["vgpr"]) + ".p2align 6\n" + kd("gather_kernel", i2["vgpr"])
    open(o.o, "w").write(out)
    print(f"wrote {o.o}: k1 {i1} k2 {i2} hazards {n}", file=sys.stderr)

if __name__ == "__main__":
    main()
```

```python
import sys, argparse
from asmlib import Asm, vr, sr, check

HDR = """; Kernarg layout for this problem (88 bytes, ptrs only, base s[0:1]):
"""

NCH = 256
CS = 2560
IDX_OFF = 0x40000
PAY_OFF = 0x300000
TS_OFF = 0x1000000
MAGIC = 429497
XBYTES = 5120000
FL = {"plain": "", "nt": " nt", "sc1": " sc1", "sc0sc1": " sc0 sc1", "ntsc1": " sc1 nt", "sc0": " sc0"}

def dpp_scan(a, v):
    for sh in (1, 2, 4, 8):
        a("s_nop 1")
        a(f"v_add_u32_dpp {v}, {v}, {v} row_shr:{sh} row_mask:0xf bank_mask:0xf bound_ctrl:0")
    a("s_nop 1")
    a(f"v_add_u32_dpp {v}, {v}, {v} row_bcast:15 row_mask:0xa bank_mask:0xf")
    a("s_nop 1")
    a(f"v_add_u32_dpp {v}, {v}, {v} row_bcast:31 row_mask:0xc bank_mask:0xf")

class Stamps:
    def __init__(self, a, on, regs, kidx):
        self.a = a; self.on = on; self.regs = regs; self.n = 0; self.kidx = kidx; self.clks = []
    def __call__(self, name=""):
        if not self.on: return
        self.a(f"s_memrealtime {sr(self.regs[self.n], 2)}")
        self.a("s_waitcnt lgkmcnt(0)")
        self.n += 1
    def clk(self, reg):
        if not self.on: return
        self.a(f"s_memtime {sr(reg, 2)}")
        self.clks.append(reg)
    def dump(self, sws, vt):
        if not self.on: return
        a = self.a
        a("s_mov_b64 exec, -1")
        a(f"v_lshrrev_b32 {vr(vt)}, 6, v0")
        a(f"s_lshl_b32 s3, s2, 4")
        a(f"s_add_u32 s3, s3, {self.kidx*256*16}")
        a(f"v_add_u32 {vr(vt)}, s3, {vr(vt)}")
        a(f"v_lshlrev_b32 {vr(vt)}, 6, {vr(vt)}")
        a(f"v_add_u32 {vr(vt)}, {TS_OFF}, {vr(vt)}")
        a("s_mov_b64 exec, 1")
        for i in range(self.n):
            a(f"v_mov_b32 {vr(vt+1)}, {sr(self.regs[i])}")
            a(f"global_store_dword {vr(vt)}, {vr(vt+1)}, {sr(sws,2)} offset:{4*i}")
        for i, r in enumerate(self.clks):
            a(f"v_mov_b32 {vr(vt+1)}, {sr(r)}")
            a(f"global_store_dword {vr(vt)}, {vr(vt+1)}, {sr(sws,2)} offset:{4*(14+i)}")

def gen_k1(a, o):
    HIST, BASE, IDXS, PAYS = 0, 1024, 2048, 12288
    st = Stamps(a, o.ts, list(range(60, 90, 2)), 0)
    ldm = FL[o.k1ld]; stm = FL[o.k1st]
    a(".p2align 8")
    a.label("bucket_kernel")
    a(f"s_cmp_ge_u32 s2, {NCH}")
    a("s_cbranch_scc1 K1_END")
    a("s_load_dwordx8 s[8:15], s[0:1], 8")
    a("s_load_dwordx2 s[16:17], s[0:1], 80     ; ws")
    a("s_load_dwordx2 s[18:19], s[0:1], 0      ; x")
    if o.cpf:
        a("s_getpc_b64 s[4:5]")
        a.label("K1_PC")
        a("v_lshlrev_b32 v68, 7, v0")
        a("v_cmp_gt_u32 vcc, K2_END-K1_PC, v68")
        a("s_mov_b64 exec, vcc")
        a("s_cbranch_execz K1_NOCPF")
        a("global_load_dword v69, v68, s[4:5]")
        a.label("K1_NOCPF")
        a("s_mov_b64 exec, -1")
    a("s_mul_i32 s3, s2, 625")
    a("s_add_u32 s24, s3, 625")
    a("s_lshr_b32 s3, s3, 2")
    a("s_lshr_b32 s24, s24, 2")
    a("s_sub_u32 s24, s24, s3")
    a("s_lshl_b32 s24, s24, 2")
    a("s_lshl_b32 s3, s3, 6")
    a("v_lshl_add_u32 v1, v0, 3, s3")
    a("s_lshl_b32 s25, s24, 3")
    a("v_add_u32 v48, s25, v1")
    a("v_lshlrev_b32 v3, 2, v0")
    a("v_mov_b32 v45, 0")
    a("ds_write_b32 v3, v45")
    a("v_cmp_gt_u32 s[20:21], s24, v0")
    a("v_lshlrev_b32 v2, 1, v1")
    a("v_lshlrev_b32 v49, 1, v48")
    a("s_mov_b64 exec, s[20:21]")
    a("s_waitcnt lgkmcnt(0)")
    st("start")
    def ld(nm):
        if nm == "d":
            a(f"global_load_dwordx2 v[4:5], v1, s[10:11]{ldm}"); a(f"global_load_dwordx2 v[6:7], v48, s[10:11]{ldm}")
        if nm == "s":
            a(f"global_load_dwordx2 v[8:9], v1, s[8:9]{ldm}"); a(f"global_load_dwordx2 v[10:11], v48, s[8:9]{ldm}")
        if nm == "h":
            a(f"global_load_dwordx4 v[12:15], v2, s[12:13]{ldm}"); a(f"global_load_dwordx4 v[16:19], v49, s[12:13]{ldm}")
        if nm == "e":
            a(f"global_load_dwordx4 v[20:23], v2, s[14:15]{ldm}"); a(f"global_load_dwordx4 v[24:27], v49, s[14:15]{ldm}")
    g0, g1, g2 = o.k1ord.split("/")
    assert (g0 + g1 + g2) == "dshe"
    for c in g0: ld(c)
    a(f"s_mov_b32 s22, {MAGIC}")
    a("s_movk_i32 s23, 625")
    a("v_mov_b32 v45, 1")
    a("s_barrier")
    for c in g1: ld(c)
    a(f"s_waitcnt vmcnt({2*(len(g0)+len(g1)) - 2})")
    st("dst")
    for i in range(4):
        a(f"v_mul_u32_u24 v{28+i}, s22, v{4+i}")
    for i in range(4):
        a(f"v_lshrrev_b32 v{36+i}, 24, v{28+i}       ; bucket")
    for i in range(4):
        a(f"v_lshlrev_b32 v{28+i}, 2, v{36+i}")
        a(f"ds_add_rtn_u32 v{32+i}, v{28+i}, v45 offset:{HIST}")
    for c in g2: ld(c)
    a("s_mov_b64 exec, -1")
    a("v_and_b32 v46, 63, v0")
    a("v_lshlrev_b32 v46, 4, v46")
    a("s_waitcnt lgkmcnt(0)")
    a("s_barrier")
    a(f"ds_read_b128 v[50:53], v46 offset:{HIST}")
    for i in range(4):
        a(f"v_mad_u32_u24 v{36+i}, v{36+i}, s23, 15")
    for i in range(4):
        a(f"v_lshrrev_b32 v{36+i}, 4, v{36+i}")
    for i in range(4):
        a(f"v_sub_u32 v{4+i}, v{4+i}, v{36+i}")
    a("s_waitcnt lgkmcnt(0)")
    a("v_add_u32 v42, v50, v51")
    a("v_add_u32 v43, v42, v52")
    a("v_add_u32 v44, v43, v53")
    a("v_mov_b32 v47, v44")
    fill = []
    for i in range(4):
        fill += [f"v_and_b32 v{36+i}, 7, v{4+i}", f"v_lshrrev_b32 v{4+i}, 3, v{4+i}", f"v_lshl_or_b32 v{4+i}, v{36+i}, 5, v{4+i}"]
    steps = [f"row_shr:{s} row_mask:0xf bank_mask:0xf bound_ctrl:0" for s in (1, 2, 4, 8)] + \
            ["row_bcast:15 row_mask:0xa bank_mask:0xf", "row_bcast:31 row_mask:0xc bank_mask:0xf"]
    for k, s in enumerate(steps):
        a(fill[2*k]); a(fill[2*k+1])
        a(f"v_add_u32_dpp v47, v47, v47 {s}")
    a("v_sub_u32 v40, v47, v44")
    a("v_add_u32 v41, v40, v50")
    a("v_add_u32 v42, v40, v42")
    a("v_add_u32 v43, v40, v43")
    a(f"ds_write_b128 v46, v[40:43] offset:{BASE}")
    a("s_mov_b64 exec, s[20:21]")
    for i in range(4):
        a(f"ds_read_b32 v{36+i}, v{28+i} offset:{BASE}")
    a("s_mov_b64 exec, -1")
    a("v_lshrrev_b32 v54, 6, v0")
    a("s_and_b32 s3, s2, 7")
    a("s_lshl_b32 s3, s3, 5")
    a("v_readfirstlane_b32 s26, v54")
    a("s_lshr_b32 s25, s2, 3")
    a("s_add_u32 s3, s3, s25")
    a("s_lshl_b32 s3, s3, 2")
    a("s_cmp_lg_u32 s26, 9")
    a("s_cbranch_scc1 K1_NOTAB")
    a("v_lshl_add_u32 v47, v46, 8, s3")
    for i in range(4):
        a(f"v_lshl_or_b32 v{50+i}, v{50+i}, 16, v{40+i}")
        a(f"global_store_dword v47, v{50+i}, s[16:17] offset:{1024*i}")
    a.label("K1_NOTAB")
    a("s_mov_b64 exec, s[20:21]")
    a("s_waitcnt vmcnt(4)")
    if o.P > 1:
        a(f"s_mov_b32 s22, {(o.P << 24) // 10000}")
        for i in range(4):
            a(f"v_mul_u32_u24 v{40+i}, s22, v{8+i}")
        for i in range(4):
            a(f"v_lshrrev_b32 v{40+i}, 24, v{40+i}")
        for i in range(4):
            a(f"v_lshl_or_b32 v{4+i}, v{40+i}, 3, v{4+i}")
    for i in range(4):
        a(f"v_lshl_or_b32 v{4+i}, v{8+i}, 9, v{4+i}")
    a("s_waitcnt lgkmcnt(0)")
    for i in range(4):
        a(f"v_add_u32 v{8+i}, v{36+i}, v{32+i}")
    for i in range(4):
        a(f"v_lshlrev_b32 v{28+i}, 2, v{8+i}")
        a(f"ds_write_b32 v{28+i}, v{4+i} offset:{IDXS}")
    for i in range(4):
        a(f"v_lshlrev_b32 v{8+i}, 4, v{8+i}")
    st("pos")
    a("s_mov_b64 exec, -1")
    a("v_lshlrev_b32 v1, 4, v0")
    a(f"s_mul_i32 s3, s2, {CS*4}")
    a(f"s_add_u32 s3, s3, {IDX_OFF}")
    a("v_add_u32 v2, s3, v1")
    a(f"s_mul_i32 s3, s2, {CS*16}")
    a(f"s_add_u32 s3, s3, {PAY_OFF}")
    a("v_add_u32 v3, s3, v1")
    a("v_add_u32 v4, 10240, v3")
    a("v_add_u32 v5, 20480, v3")
    a("v_add_u32 v6, 30720, v3")
    if o.mall:
        a(f"s_mul_i32 s3, s2, {XBYTES//NCH}")
        a(f"v_lshl_add_u32 v7, v0, 7, s3")
        a(f"v_cmp_gt_u32 vcc, {(XBYTES//NCH + 127) >> 7}, v0")
        a("s_mov_b64 s[28:29], vcc")
    if o.pf:
        sl = o.pf // 32
        a("s_lshr_b32 s3, s2, 3")
        a(f"s_mul_i32 s3, s3, {sl}")
        a(f"v_lshl_add_u32 v40, v0, 7, s3")
        a(f"v_cmp_gt_u32 vcc, {(sl + 127) >> 7}, v0")
        a("s_mov_b64 s[30:31], vcc")
    a("s_lshl_b32 s25, s24, 2")
    a("s_sub_u32 s25, s25, 1920")
    a("v_cmp_gt_u32 s[26:27], s25, v0")
    a("s_mov_b64 exec, s[20:21]")
    a("s_waitcnt vmcnt(2)")
    for i in range(4):
        a(f"ds_write_b64 v{8+i}, v[{12+2*i}:{13+2*i}] offset:{PAYS}")
    a("s_waitcnt vmcnt(1)")
    for i in range(2):
        a(f"ds_write_b64 v{8+i}, v[{20+2*i}:{21+2*i}] offset:{PAYS+8}")
    a("s_waitcnt vmcnt(0)")
    st("allin")
    for i in range(2, 4):
        a(f"ds_write_b64 v{8+i}, v[{20+2*i}:{21+2*i}] offset:{PAYS+8}")
    a("s_mov_b64 exec, -1")
    a("s_waitcnt lgkmcnt(0)")
    a("s_barrier")
    st("staged")
    for j in range(4):
        a(f"ds_read_b128 v[{52+4*j}:{55+4*j}], v1 offset:{PAYS + 10240*j}")
    a(f"ds_read_b128 v[48:51], v1 offset:{IDXS}")
    def touches():
        if o.mall:
            a("s_mov_b64 exec, s[28:29]")
            a("s_cbranch_execz K1_NOMALL")
            a("global_load_dword v8, v7, s[18:19]")
            a.label("K1_NOMALL")
        if o.pf:
            a("s_mov_b64 exec, s[30:31]")
            a("s_cbranch_execz K1_NOPF")
            a("global_load_dword v10, v40, s[18:19]")
            a.label("K1_NOPF")
        a("s_mov_b64 exec, -1")
    if o.touchfirst: touches()
    for j in range(4):
        a(f"s_waitcnt lgkmcnt({4-j})")
        if j == 3: a("s_mov_b64 exec, s[26:27]")
        a(f"global_store_dwordx4 v{3+j}, v[{52+4*j}:{55+4*j}], s[16:17]{stm}")
    a("s_mov_b64 exec, s[20:21]")
    a("s_waitcnt lgkmcnt(0)")
    a(f"global_store_dwordx4 v2, v[48:51], s[16:17]{stm}")
    if not o.touchfirst: touches()
    st("issued")
    if o.ts:
        a("s_waitcnt vmcnt(0)")
        st("done")
    st.dump(16, 30)
    a.label("K1_END")
    a("s_endpgm")
    return dict(lds=12288 + 40960, vgpr=72, threads=640)

def gen_k2(a, o):
    NW = 8; NT = 512; NR = 8; D = o.D; P = o.P
    PO = [0, 1056, 2080, 3136]
    SLOT = 4160; WR = D * SLOT; RING = NW * WR
    HIST = 0; MISC = 1024; BASE = 2048
    PS = 1056
    WOL = RING; ZERO = WOL + 8 * PS; CONST = ZERO + 128; WOFF = CONST + 512
    CAP = min(((163840 - WOFF) // 20) // 8 * 8, o.capmax)
    POFF = WOFF + CAP * 4
    LDS = POFF + CAP * 16
    assert LDS <= 163840 and POFF % 16 == 0 and WOFF % 16 == 0
    TAILW = 8 * (D + 2)
    assert 4 * NT + 56 + TAILW <= CAP
    DUMMY = 0x3fff << 9
    st = Stamps(a, o.ts, list(range(52, 70, 2)) + [78, 80, 82, 84], 1)
    sX, sCG, sWR, sWO, sOUT, sWS = 4, 8, 10, 12, 14, 16
    sB, sN0, sN1, sWv = 18, 19, 20, 21
    sIDX, sPAY = 22, 24
    sSlow, sWin, sHalf, sMaxc = 26, 27, 28, 29
    sPos, sEnd, sI, sLim, sT0, sT1, sRB, sRE = 30, 31, 32, 33, 34, 35, 36, 37
    sAny = 38
    sXS = 40
    sWS4 = 44
    sSO = 48
    sTot = 51
    sWOFF, sPOFF = 6, 7
    sRM = 70
    sMA, sMB = 70, 72
    def mk0(r): return sr(sRM + 2 * r, 2)
    def mk1(r): return sr(sRM + 16 + 2 * r, 2)
    vEnt, vRb, vPo, vW0, vW1, vRk0, vRk1, vP0, vP1, t = 2, 10, 18, 26, 34, 42, 50, 58, 90, 122
    vKa = 136
    vCg = 152; vWn = 154; vEnd = 158
    vPS, vPE, vPW, vTr = 159, 160, 161, 162
    vLane, vOff, vTrL, vStep, vLW, vLS, vLE, vLive, vRA, vRB, v128 = range(164, 175)
    vAcc = 176
    vX, vD, vT, vTm, vSh, vEa, vDa = 2, 18, 26, 30, 34, 38, 40
    vEb = 132
    vWo = 90; vWr = 136
    NV = 256

    def tab_loads():
        a(f"global_load_dwordx4 {vr(vEnt,4)}, v{t+6}, {sr(sWS,2)}")
        a(f"global_load_dwordx4 {vr(vEnt+4,4)}, v{t+6}, {sr(sWS,2)} offset:16")
    def tab_addr():
        a(f"v_lshrrev_b32 v1, 4, v0")
        a(f"s_lshl_b32 s3, s{sB}, 10")
        a(f"v_lshl_add_u32 v{t+6}, v1, 5, s3")
    def clear_hist():
        a(f"v_mov_b32 v{t}, 0")
        a(f"v_lshlrev_b32 v{t+5}, 2, v0")
        a(f"ds_write_b32 v{t+5}, v{t}")

    a(".p2align 8")
    a.label("gather_kernel")
    a(f"s_cmp_ge_u32 s2, {NCH}")
    a("s_cbranch_scc1 K2_END")
    a(f"s_load_dwordx2 {sr(sWS,2)}, s[0:1], 80")
    a(f"s_load_dwordx8 s[8:15], s[0:1], 40")
    a(f"s_load_dwordx2 {sr(sX,2)}, s[0:1], 0")
    a(f"s_and_b32 s{sB}, s2, 7")
    a(f"s_lshl_b32 s{sB}, s{sB}, 5")
    a(f"s_lshr_b32 s3, s2, 3")
    a(f"s_add_u32 s{sB}, s{sB}, s3              ; bucket")
    a(f"v_lshrrev_b32 v1, 6, v0")
    a(f"v_and_b32 v{vLane}, 63, v0")
    a(f"v_readfirstlane_b32 s{sWv}, v1")
    tab_addr()
    if o.ipf:
        a(f"s_and_b32 s3, s2, 0xf8")
        a(f"s_add_u32 s3, s3, s{sWv}")
        a(f"s_mul_i32 s3, s3, {CS*4}")
        a(f"s_and_b32 s{sT0}, s2, 7")
        a(f"s_mul_i32 s{sT0}, s{sT0}, 1250")
        a(f"s_add_u32 s3, s3, s{sT0}")
        a(f"s_add_u32 s3, s3, {IDX_OFF - 64}")
        a(f"v_lshl_add_u32 v{t+7}, v{vLane}, 7, s3")
    a(f"s_mul_i32 s{sRB}, s{sWv}, {WR}")
    a(f"s_mov_b32 s{sWS4+2}, 8192")
    a(f"s_mov_b32 s{sWS4+3}, 0x20000")
    a("s_waitcnt lgkmcnt(0)")
    st("start")
    tab_loads()
    nx = 0
    if o.ipf:
        a(f"s_mov_b64 exec, {hex((1 << o.ipf) - 1)}")
        a(f"global_load_dword v175, v{t+7}, {sr(sWS,2)}")
        a("s_mov_b64 exec, -1")
        nx += 1
    a(f"s_mov_b32 s{sWS4}, s{sWO}")
    a(f"s_mov_b32 s{sWS4+1}, s{sWO+1}")
    clear_hist()
    a(f"v_and_b32 v{t+5}, 31, v0")
    a(f"v_lshlrev_b32 v{t+5}, 2, v{t+5}")
    a(f"v_add_u32 v{t+5}, {ZERO}, v{t+5}")
    a(f"ds_write_b32 v{t+5}, v{t}")
    a(f"s_mov_b32 s{sSlow}, 0")
    a(f"s_mov_b32 s{sWin}, 0")
    a(f"s_mov_b32 s{sHalf}, 0")
    a(f"s_add_u32 s{sIDX}, s{sWS}, {IDX_OFF}")
    a(f"s_addc_u32 s{sIDX+1}, s{sWS+1}, 0")
    a(f"s_add_u32 s{sPAY}, s{sWS}, {PAY_OFF}")
    a(f"s_addc_u32 s{sPAY+1}, s{sWS+1}, 0")
    a(f"s_mov_b32 s{sWOFF}, {WOFF}")
    a(f"s_mov_b32 s{sPOFF}, {POFF}")
    a("s_branch K2_BATCH0")

    a.label("K2_BATCH")
    tab_addr()
    tab_loads()
    clear_hist()
    a("s_waitcnt vmcnt(0)")

    a.label("K2_BATCH0")
    thL, thH, th1, l16 = t, t + 1, t + 2, t + 3
    a(f"v_and_b32 v{l16}, 15, v0")
    a(f"s_lshl_b32 s{sT0}, s{sWin}, 4           ; 16*window")
    a(f"s_cmp_eq_u32 s{sHalf}, 2")
    a(f"s_cselect_b32 s{sT1}, 0x10000, s{sT0}")
    a(f"v_add_u32 v{thL}, s{sT1}, v{l16}")
    a(f"s_cmp_eq_u32 s{sHalf}, 1")
    a(f"s_cselect_b32 s{sT1}, 0x10000, s{sT0}")
    a(f"v_add_u32 v{thH}, s{sT1}, v{l16}")
    a(f"s_cmp_eq_u32 s{sSlow}, 0")
    a(f"s_cselect_b32 s{sT1}, 16, 0x10000")
    a(f"v_add_u32 v{th1}, s{sT1}, v{l16}")
    a(f"v_lshrrev_b32 v1, 4, v{vLane}")
    a(f"v_lshl_add_u32 v1, v1, 6, s{sWv}")
    a(f"v_mul_u32_u24 v{vRb}, {CS}, v1")
    a(f"v_add3_u32 v{vRb}, v{vRb}, v{l16}, s{sT0}")
    for r in range(1, NR):
        a(f"v_add_u32 v{vRb+r}, {8*CS*r}, v{vRb}")
    a(f"s_waitcnt vmcnt({nx})")
    st("table")
    for r in range(NR):
        a(f"v_add_u32_sdwa v{vRb+r}, v{vEnt+r}, v{vRb+r} dst_sel:DWORD dst_unused:UNUSED_PAD src0_sel:WORD_0 src1_sel:DWORD")
        a(f"v_cmp_gt_u32_sdwa {mk0(r)}, v{vEnt+r}, v{thL if r < NR//2 else thH} src0_sel:WORD_1 src1_sel:DWORD")
        a(f"v_lshlrev_b32 v{vPo+r}, 2, v{vRb+r}")
        a(f"s_mov_b64 exec, {mk0(r)}")
        a(f"global_load_dword v{vW0+r}, v{vPo+r}, {sr(sIDX,2)}")
        a("s_mov_b64 exec, -1")
    for r in range(NR):
        a(f"v_cmp_gt_u32_sdwa {mk1(r)}, v{vEnt+r}, v{th1} src0_sel:WORD_1 src1_sel:DWORD")
        a(f"v_lshlrev_b32 v{vRb+r}, 4, v{vRb+r}")
    a(f"s_or_b64 {sr(sAny,2)}, {mk1(0)}, {mk1(1)}")
    for r in range(2, NR):
        a(f"s_or_b64 {sr(sAny,2)}, {sr(sAny,2)}, {mk1(r)}")
    a("s_cbranch_scc0 K2_NOW1A")
    for r in range(NR):
        a(f"s_mov_b64 exec, {mk1(r)}")
        a(f"s_cbranch_execz K2_W1A_{r}")
        a(f"global_load_dword v{vW1+r}, v{vPo+r}, {sr(sIDX,2)} offset:64")
        a(f"global_load_dwordx4 {vr(vP1+4*r,4)}, v{vRb+r}, {sr(sPAY,2)} offset:256")
        a.label(f"K2_W1A_{r}")
    a.label("K2_NOW1A")
    a("s_waitcnt lgkmcnt(0)")
    a("s_barrier")
    sched = [int(x) for x in o.psched.split(",")]
    assert sum(sched) == NR and len(sched) == 5
    pr = [0]
    def pay(n):
        for _ in range(n):
            r = pr[0]; pr[0] += 1
            a(f"s_mov_b64 exec, {mk0(r)}")
            a(f"global_load_dwordx4 {vr(vP0+4*r,4)}, v{vRb+r}, {sr(sPAY,2)}")
        if n: a("s_mov_b64 exec, -1")
    a("s_mov_b64 exec, -1")
    pay(sched[0])
    st("issued")
    one, two = t + 4, t + 5
    a(f"v_mov_b32 v{t+7}, {MISC}")
    a(f"s_cmp_eq_u64 {sr(sAny,2)}, 0")
    a("s_cbranch_scc1 K2_NOMAX")
    a(f"v_max3_u32 v{t+8}, v{vEnt}, v{vEnt+1}, v{vEnt+2}")
    a(f"v_max3_u32 v{t+8}, v{t+8}, v{vEnt+3}, v{vEnt+4}")
    a(f"v_max3_u32 v{t+8}, v{t+8}, v{vEnt+5}, v{vEnt+6}")
    a(f"v_max_u32 v{t+8}, v{t+8}, v{vEnt+7}")
    a(f"v_lshrrev_b32 v{t+8}, 16, v{t+8}")
    a(f"v_cmp_lt_u32 vcc, 32, v{t+8}")
    a("s_mov_b64 exec, vcc")
    a(f"ds_max_u32 v{t+7}, v{t+8}")
    a("s_mov_b64 exec, -1")
    a.label("K2_NOMAX")
    a(f"s_cmp_lg_u32 s{sSlow}, 0")
    a("s_cbranch_scc1 K2_NOSETUP")
    a(f"s_mul_i32 s{sN0}, s{sB}, 625")
    a(f"s_add_u32 s{sN1}, s{sN0}, 640")
    a(f"s_add_u32 s{sN0}, s{sN0}, 15")
    a(f"s_lshr_b32 s{sN0}, s{sN0}, 4")
    a(f"s_lshr_b32 s{sN1}, s{sN1}, 4")
    a(f"s_sub_u32 s{sXS}, s{sX}, {PO[3]}")
    a(f"s_subb_u32 s{sXS+1}, s{sX+1}, 0")
    a(f"s_mov_b32 s{sXS+2}, {XBYTES + PO[3]}")
    a(f"s_mov_b32 s{sXS+3}, 0x20000")
    for i in range(3): a(f"s_movk_i32 s{sSO+i}, {PO[3]-PO[i]}")
    if D == 2:
        a(f"s_add_u32 s{sRE}, s{sRB}, {SLOT}")
        a(f"s_xor_b32 s{sRE}, s{sRE}, s{sRB}")
    else:
        a(f"s_add_u32 s{sRE}, s{sRB}, {WR}")
    L = vLane; u, f, x_ = t + 8, t + 9, t + 10
    a(f"v_bfe_u32 v{f}, v{L}, 2, 2              ; (L>>2)&3")
    a(f"v_and_b32 v{u}, 3, v{L}                 ; L&3")
    a(f"v_lshrrev_b32 v{x_}, 4, v{L}            ; g")
    a(f"v_lshlrev_b32 v{vOff}, 7, v{f}")
    a(f"v_lshl_add_u32 v{vOff}, v{u}, 4, v{vOff}")
    a(f"v_and_b32 v{vTrL}, 1, v{x_}")
    a(f"v_lshl_add_u32 v{vOff}, v{vTrL}, 6, v{vOff}")
    a(f"v_add_u32 v{vTrL}, 1, v{x_}")
    a(f"v_lshrrev_b32 v{vTrL}, 1, v{vTrL}")
    a(f"v_lshlrev_b32 v{vTrL}, 5, v{vTrL}")
    a(f"v_lshl_add_u32 v{vTrL}, v{x_}, 10, v{vTrL}")
    a(f"v_lshl_add_u32 v{vTrL}, v{f}, 6, v{vTrL}")
    a(f"v_lshl_add_u32 v{vTrL}, v{u}, 3, v{vTrL}")
    a(f"v_lshrrev_b32 v{vLW}, 5, v{L}")
    a(f"v_lshl_add_u32 v{vLW}, v{vLW}, 4, s{sWOFF}")
    a(f"v_lshl_add_u32 v{vLE}, v{x_}, 4, s{sPOFF}")
    a(f"v_lshl_add_u32 v{vLE}, v{u}, 1, v{vLE}")
    a(f"v_add_u32 v{vLE}, 8, v{vLE}")
    a(f"v_cmp_eq_u32 {sr(sT0,2)}, v{u}, v{x_}")
    a(f"v_lshl_add_u32 v{f}, v{f}, 4, s{sPOFF}")
    a(f"v_mov_b32 v{vLS}, {ZERO}")
    a(f"v_cndmask_b32 v{vLS}, v{vLS}, v{f}, {sr(sT0,2)}")
    a(f"v_cndmask_b32 v{vLive}, 0, 16, {sr(sT0,2)}")
    a(f"v_lshlrev_b32 v{vStep}, 3, v{vLive}")
    a(f"v_sub_u32 v{vRA}, 8, v{x_}")
    a(f"v_sub_u32 v{vRB}, 4, v{x_}")
    a(f"v_mov_b32 v{v128}, 128")
    a.label("K2_NOSETUP")
    a(f"v_mov_b32 v{one}, 1")
    a(f"v_mov_b32 v{two}, 2")
    a(f"v_lshlrev_b32 v{t+6}, 4, v{vLane}")
    m1, m2 = t + 12, t + 13
    a(f"v_and_b32 v{m2}, 7, v{vLane}")
    a(f"v_cmp_lt_u32 vcc, 0, v{m2}")
    a(f"v_cmp_lt_u32 {sr(sT0,2)}, 1, v{m2}")
    a(f"s_lshl_b32 s3, s{sWv}, 7")
    a(f"v_cndmask_b32 v{m1}, 0, -1, vcc")
    a(f"v_cndmask_b32 v{m2}, 0, -1, {sr(sT0,2)}")
    a(f"v_lshl_add_u32 v{vEnd}, v{vLane}, 2, s3")
    a(f"s_waitcnt vmcnt({pr[0]})")
    st("idx")
    for r in range(NR):
        a(f"s_mov_b64 exec, {mk0(r)}")
        a(f"v_lshlrev_b32_sdwa v{vKa+r}, v{two}, v{vW0+r} dst_sel:DWORD dst_unused:UNUSED_PAD src0_sel:DWORD src1_sel:BYTE_0")
        a(f"ds_add_rtn_u32 v{vRk0+r}, v{vKa+r}, v{one} offset:{HIST}")
    a(f"s_cmp_eq_u64 {sr(sAny,2)}, 0")
    a("s_cbranch_scc1 K2_NOW1B")
    for r in range(NR):
        a(f"s_mov_b64 exec, {mk1(r)}")
        a(f"s_cbranch_execz K2_W1B_{r}")
        a(f"v_lshlrev_b32_sdwa v{vPo+r}, v{two}, v{vW1+r} dst_sel:DWORD dst_unused:UNUSED_PAD src0_sel:DWORD src1_sel:BYTE_0")
        a(f"ds_add_rtn_u32 v{vRk1+r}, v{vPo+r}, v{one} offset:{HIST}")
        a.label(f"K2_W1B_{r}")
    a.label("K2_NOW1B")
    a("s_mov_b64 exec, -1")
    pay(sched[1])
    a("s_waitcnt lgkmcnt(0)")
    a("s_barrier")
    st("hist")
    h = t; b = t + 8
    a(f"ds_read_b128 {vr(h,4)}, v{t+6} offset:{HIST}")
    a(f"ds_read_b32 v{t+7}, v{t+7}")
    pay(sched[2])
    for r in range(NR):
        a(f"v_and_b32 v{vW0+r}, 0xfffffe00, v{vW0+r}")
    a("s_waitcnt lgkmcnt(0)")
    s_, y, r8 = t + 4, t + 5, h + 1
    a(f"v_add_u32 v{b+2}, v{h}, v{h+1}")
    a(f"v_add_u32 v{b+3}, v{b+2}, v{h+2}")
    a(f"v_add_u32 v{h+3}, v{b+3}, v{h+3}")
    a(f"v_readfirstlane_b32 s{sT0}, v{t+7}")
    a("s_nop 0")
    a(f"v_and_b32_dpp v{y}, v{h+3}, v{m1} row_shr:1 row_mask:0xf bank_mask:0xf bound_ctrl:0")
    a(f"v_add_u32 v{s_}, v{h+3}, v{y}")
    a("s_nop 1")
    a(f"v_and_b32_dpp v{y}, v{s_}, v{m2} row_shr:2 row_mask:0xf bank_mask:0xf bound_ctrl:0")
    a(f"v_add_u32 v{s_}, v{s_}, v{y}")
    a("s_nop 1")
    a(f"v_add_u32_dpp v{s_}, v{s_}, v{s_} row_shr:4 row_mask:0xf bank_mask:0xa")
    a(f"v_add_u32 v{r8}, 7, v{s_}")
    a(f"v_and_b32 v{r8}, -8, v{r8}")
    a(f"v_sub_u32 v{b}, v{s_}, v{h+3}")
    a("s_nop 0")
    a(f"v_mov_b32_dpp v{y}, v{r8} row_newbcast:15 row_mask:0xf bank_mask:0xf")
    a(f"v_add_u32_dpp v{b}, v{r8}, v{b} row_newbcast:7 row_mask:0xf bank_mask:0xc")
    a("s_nop 0")
    a(f"v_add_u32_dpp v{y}, v{r8}, v{y} row_newbcast:7 row_mask:0xf bank_mask:0xf")
    a(f"v_sub_u32 v{b}, v{b}, v{y}")
    a("s_nop 0")
    a(f"v_add_u32_dpp v{y}, v{y}, v{y} row_bcast:15 row_mask:0xa bank_mask:0xf")
    a("s_nop 1")
    a(f"v_add_u32_dpp v{y}, v{y}, v{y} row_bcast:31 row_mask:0xc bank_mask:0xf")
    a(f"v_add_u32 v{b}, v{b}, v{y}")
    a(f"v_add_u32 v{b+1}, v{b}, v{h}")
    a(f"v_add_u32 v{b+2}, v{b}, v{b+2}")
    a(f"v_add_u32 v{b+3}, v{b}, v{b+3}")
    a(f"ds_write_b128 v{t+6}, {vr(b,4)} offset:{BASE}")
    for r in range(NR):
        a(f"s_mov_b64 exec, {mk0(r)}")
        a(f"ds_read_b32 v{vKa+r}, v{vKa+r} offset:{BASE}")
    a("s_mov_b64 exec, -1")
    a(f"ds_read_b32 v{vEnd}, v{vEnd} offset:{BASE}")
    a(f"v_readlane_b32 s{sTot}, v{y}, 63")
    a(f"s_cmp_lg_u32 s{sSlow}, 0")
    a("s_cbranch_scc1 K2_FEAS")
    a(f"s_cmp_gt_u32 s{sTot}, {CAP-TAILW}")
    a("s_cbranch_scc1 K2_GOSLOW")
    a(f"s_cmp_lg_u32 s{sT0}, 0")
    a("s_cbranch_scc1 K2_GOSLOW")
    a.label("K2_FEAS")
    pay(sched[3])
    a(f"s_cmp_eq_u64 {sr(sAny,2)}, 0")
    a("s_cbranch_scc1 K2_NOW1C")
    for r in range(NR):
        a(f"s_mov_b64 exec, {mk1(r)}")
        a(f"s_cbranch_execz K2_W1C_{r}")
        a(f"ds_read_b32 v{vPo+r}, v{vPo+r} offset:{BASE}")
        a(f"v_and_b32 v{vW1+r}, 0xfffffe00, v{vW1+r}")
        a("s_waitcnt lgkmcnt(0)")
        a(f"v_add_u32 v{vPo+r}, v{vPo+r}, v{vRk1+r}")
        a(f"v_lshl_add_u32 v{vRk1+r}, v{vPo+r}, 2, s{sWOFF}")
        a(f"v_lshl_add_u32 v{vPo+r}, v{vPo+r}, 4, s{sPOFF}")
        a(f"ds_write_b32 v{vRk1+r}, v{vW1+r}")
        a(f"ds_write_b128 v{vPo+r}, {vr(vP1+4*r,4)}")
        a.label(f"K2_W1C_{r}")
    a.label("K2_NOW1C")
    a("s_waitcnt lgkmcnt(0)")
    for r in range(NR):
        a(f"s_mov_b64 exec, {mk0(r)}")
        a(f"v_add_u32 v{vKa+r}, v{vKa+r}, v{vRk0+r}")
        a(f"v_lshl_add_u32 v{vRk0+r}, v{vKa+r}, 2, s{sWOFF}")
        a(f"ds_write_b32 v{vRk0+r}, v{vW0+r}")
    a("s_mov_b64 exec, -1")
    a(f"v_readlane_b32 s{sPos}, v{vEnd}, 0")
    a(f"v_readlane_b32 s{sLim}, v{vEnd}, 31")
    a(f"v_readlane_b32 s{sEnd}, v{vEnd}, 1")
    a(f"v_mov_b32 v{t+2}, {DUMMY}")
    a(f"s_sub_u32 s3, 0, s{sLim}")
    a(f"s_and_b32 s3, s3, 7")
    a(f"s_cmp_eq_u32 s{sWv}, {NW-1}")
    a(f"s_cselect_b32 s3, {TAILW}, s3")
    a(f"v_add_u32 v{t}, s{sLim}, v{vLane}")
    a(f"v_lshl_add_u32 v{t+1}, v{t}, 2, s{sWOFF}")
    a(f"v_lshl_add_u32 v{vPW}, s{sPos}, 2, v{vLW}")
    a(f"s_bfm_b64 exec, s3, 0")
    a(f"ds_write_b32 v{t+1}, v{t+2}")
    a("s_mov_b64 exec, -1")
    pay(sched[4])
    a(f"v_lshrrev_b32 v{t}, 4, v{vLane}          ; g")
    a(f"v_bfe_u32 v{t+1}, v{vLane}, 2, 2")
    a(f"v_lshlrev_b32 v{t+3}, 5, v{t}")
    a(f"v_lshl_add_u32 v{t+3}, v{t+1}, 1, v{t+3}")
    a(f"v_lshlrev_b32 v{t+2}, 4, v0")
    a("s_waitcnt lgkmcnt(0)")
    a("s_barrier")
    st("barA")
    vWi = vW1
    for d in range(D):
        a(f"ds_read_b128 {vr(vWi+4*d,4)}, v{vPW} offset:{32*d}")
    a(f"ds_read_b128 {vr(vWn,4)}, v{vPW} offset:{32*D}")
    for v_ in range(4):
        a(f"global_load_ushort v{t+4+v_}, v{t+3}, {sr(sCG,2)} offset:{8*v_}")
    for r in range(NR):
        a(f"v_lshl_add_u32 v{vKa+r}, v{vKa+r}, 4, s{sPOFF}")
    a(f"v_add_u32 v{vPW}, {32*(D+1)}, v{vPW}")
    a(f"v_mad_u32_u24 v{vPS}, v{vLive}, s{sPos}, v{vLS}")
    a(f"v_lshl_add_u32 v{vPE}, s{sPos}, 4, v{vLE}")
    a(f"s_mul_i32 s3, s{sWv}, {PS}")
    a(f"s_add_u32 m0, s3, {WOL}")
    a("s_nop 0")
    a(f"buffer_load_dwordx4 v{t+2}, {sr(sWS4,4)}, 0 offen lds")
    a(f"s_cmp_lg_u32 s{sWv}, 0")
    a("s_cbranch_scc1 K2_NOWR")
    a(f"s_mov_b32 m0, {CONST}")
    a("s_mov_b64 exec, 0xffffffff")
    a(f"global_load_lds_dwordx4 v{t+2}, {sr(sWR,2)}   ; w_r")
    a("s_mov_b64 exec, -1")
    a.label("K2_NOWR")
    a(f"s_mov_b32 m0, s{sRB}")
    a("s_waitcnt lgkmcnt(0)")
    for i in range(4 * D):
        a(f"v_add_u32 v{vWi+i}, v{vWi+i}, v{vOff}")
    def dma(src):
        for i in range(4):
            so = f"s{sSO+i}" if i < 3 else "0"
            a(f"buffer_load_dwordx4 v{src+i}, {sr(sXS,4)}, {so} offen offset:{PO[i]} lds")
    def dma0(d):
        a(f"s_add_u32 s3, s{sPos}, {8*d}")
        a(f"s_cmp_lt_u32 s3, s{sLim}")
        a("s_cselect_b64 exec, -1, 1")
        dma(vWi + 4 * d)
        a("s_mov_b64 exec, -1")
    D0 = o.D0 if o.D0 >= 0 else D
    for d in range(D0):
        dma0(d)
        a(f"s_add_u32 m0, m0, {SLOT}")
    st("dma0")
    for r in range(NR):
        a(f"s_waitcnt vmcnt({4*D0 + 5 + NR - 1 - r})")
        a(f"s_mov_b64 exec, {mk0(r)}")
        a(f"ds_write_b128 v{vKa+r}, {vr(vP0+4*r,4)}")
    a("s_mov_b64 exec, -1")
    for d in range(D0, D):
        dma0(d)
        a(f"s_add_u32 m0, m0, {SLOT}")
    a(f"s_cmp_lg_u32 s{sSlow}, 0")
    a("s_cbranch_scc1 K2_NOCLR")
    for i in range(0, 80, 2):
        a(f"v_pk_mul_f32 {vr(vAcc+i,2)}, 0, 0") if False else None
    for i in range(80):
        a(f"v_mov_b32 v{vAcc+i}, 0")
    a.label("K2_NOCLR")
    a(f"s_waitcnt vmcnt({4*D}) lgkmcnt(0)")
    a("s_barrier")
    st("barB")
    st.clk(74)
    a(f"s_mov_b32 m0, s{sRB}")
    def lds_next():
        a(f"ds_read2_b64 {vr(vSh,4)}, v{vPS} offset0:0 offset1:8")
        a(f"ds_read_u16_d16_hi v{vEa}, v{vPE}")
        a(f"ds_read_u16_d16_hi v{vEb}, v{vPE} offset:64")
    a(f"v_mov_b32 v{vEa}, 0")
    a(f"v_mov_b32 v{vEb}, 0")
    if o.ts: a("s_waitcnt lgkmcnt(0)")
    lds_next()
    a(f"v_lshl_or_b32 v{vCg}, v{t+5}, 16, v{t+4}")
    a(f"v_lshl_or_b32 v{vCg+1}, v{t+7}, 16, v{t+6}")
    a(f"v_and_b32 v{t+2}, 3, v{vLane}")
    a(f"v_lshlrev_b32 v{t+3}, 7, v{t+1}")
    a(f"v_lshl_add_u32 v{t+3}, v{t+2}, 3, v{t+3}")
    a(f"v_add_u32 v{t+3}, {CONST}, v{t+3}")
    for tt in range(4):
        a(f"ds_read_b64_tr_b16 {vr(vWr+4*tt+2,2)}, v{t+3} offset:{32*tt}")
    a(f"v_mul_u32_u24 v{t+3}, {2*PS}, v{t+1}")
    a(f"v_lshl_add_u32 v{t+3}, v{t}, 8, v{t+3}")
    a(f"v_lshl_add_u32 v{t+3}, v{t+2}, 4, v{t+3}")
    a(f"v_add_u32 v{t+3}, {WOL}, v{t+3}")
    fr = []
    for tp in range(4):
        for s2_ in range(2):
            for kp in range(2):
                off = s2_ * PS + kp * 128 + (tp >> 1) * 64 + (tp & 1) * 8
                fr.append(f"ds_read_b64_tr_b16 {vr(vWo + (tp*2+s2_)*4 + 2*kp, 2)}, v{t+3} offset:{off}")
    for x in fr[:8]: a(x)
    a("s_waitcnt lgkmcnt(8)")
    for tt in range(4):
        w = vWr + 4 * tt
        a(f"v_lshlrev_b32 v{w}, 16, v{w+2}")
        a(f"v_and_b32 v{w+1}, 0xffff0000, v{w+2}")
        a(f"v_lshlrev_b32 v{w+2}, 16, v{w+3}")
        a(f"v_and_b32 v{w+3}, 0xffff0000, v{w+3}")
    a("s_waitcnt lgkmcnt(0)")
    for x in fr[8:]: a(x)
    a("s_waitcnt lgkmcnt(4)")
    a(f"v_add_u32 v{vTr}, m0, v{vTrL}")
    a(f"s_mov_b32 s{sI}, 1")
    if o.prio == 1: a(f"s_setprio {P-1}")
    if o.prio in (2, 3):
        a(f"s_cmp_lt_u32 s{sWv}, 4")
        a("s_cbranch_scc1 K2_PR0")
        a("s_setprio 1")
        a.label("K2_PR0")
    a(f"s_cmp_eq_u32 s{sPos}, s{sLim}")
    a("s_cbranch_scc1 K2_DONE")
    a(f"s_sub_u32 s{sLim}, s{sLim}, {8*(D-1)}")
    a("s_branch K2_L0")
    for _ in range(o.pad): a("s_nop 0")

    def mains(j, T):
        if "nomain" in o.abl: return
        for tt in range(4):
            c_ = vr(vAcc + 16 * j + 4 * tt, 4)
            a(f"v_mfma_f32_16x16x32_bf16 {c_}, {vr(T,4)}, {vr(vX+4*tt,4)}, {c_}")
    for j in range(5):
        if o.align: a(f".p2align {o.align}")
        a.label(f"K2_M{j}")
        mains(j, vT)
        a.label(f"K2_L{j}")
        def trreads():
            if "notr" in o.abl: return
            for tt in range(4):
                off = (tt >> 1) * 256 + (tt & 1) * 32
                a(f"ds_read_b64_tr_b16 {vr(vX+4*tt,2)}, v{vTr} offset:{off}")
                a(f"ds_read_b64_tr_b16 {vr(vX+4*tt+2,2)}, v{vTr} offset:{off+512}")
        def amfma():
            if "not" in o.abl: return
            a(f"v_mfma_f32_16x16x16_bf16 {vr(vD,4)}, {vr(vSh,2)}, {vr(vCg,2)}, 0")
            a(f"v_mfma_f32_16x16x16_bf16 {vr(vD+4,4)}, {vr(vSh+2,2)}, {vr(vCg,2)}, 0")
        def muls():
            if "not" in o.abl: return
            if o.pk:
                for i in range(4):
                    a(f"v_pk_mul_f32 {vr(vD+2*i,2)}, {vr(vD+2*i,2)}, {vr(vEa if i < 2 else vEb,2)} op_sel:[0,0] op_sel_hi:[1,0]")
            else:
                for i in range(8):
                    a(f"v_mul_f32 v{vD+i}, v{vD+i}, v{vEa if i < 4 else vEb}")
        def cvts():
            if "not" in o.abl: return
            for i in range(4):
                a(f"v_cvt_pk_bf16_f32 v{vT+i}, v{vD+2*i}, v{vD+2*i+1}")
        def ring():
            if D == 2:
                a(f"s_xor_b32 m0, m0, s{sRE}")
            else:
                a(f"s_add_u32 m0, m0, {SLOT}")
                a(f"s_cmp_eq_u32 m0, s{sRE}")
                a(f"s_cselect_b32 m0, s{sRB}, m0")
        if o.sched == 0:
            a(f"s_waitcnt vmcnt({4*(D-1)})")
            trreads()
            a(f"s_add_u32 s{sPos}, s{sPos}, 8")
            a("s_waitcnt lgkmcnt(8)" if "notr" not in o.abl else "s_waitcnt lgkmcnt(0)")
            amfma()
            for i in range(4):
                a(f"v_add_u32 v{vDa+i}, v{vWn+i}, v{vOff}")
            a(f"ds_read_b128 {vr(vWn,4)}, v{vPW}")
            a(f"v_add_u32 v{vPS}, v{vPS}, v{vStep}")
            a(f"v_add_u32 v{vPW}, 32, v{vPW}")
            a(f"v_add_u32 v{vPE}, v{vPE}, v{v128}")
            a(f"s_cmp_lt_i32 s{sPos}, s{sLim}")
            muls()
            lds_next()
            a("s_cselect_b64 exec, -1, 1")
            a("s_waitcnt lgkmcnt(4)")
            dma(vDa)
            a("s_mov_b64 exec, -1")
            ring()
            cvts()
            a(f"v_add_u32 v{vTr}, m0, v{vTrL}")
        elif o.sched == 1:
            a("s_waitcnt lgkmcnt(0)")
            amfma()
            for i in range(4):
                a(f"v_add_u32 v{vDa+i}, v{vWn+i}, v{vOff}")
            a(f"ds_read_b128 {vr(vWn,4)}, v{vPW}")
            a(f"v_add_u32 v{vPS}, v{vPS}, v{vStep}")
            a(f"v_add_u32 v{vPW}, 32, v{vPW}")
            a(f"v_add_u32 v{vPE}, v{vPE}, v{v128}")
            a(f"s_add_u32 s{sPos}, s{sPos}, 8")
            a(f"s_cmp_lt_i32 s{sPos}, s{sLim}")
            a(f"s_waitcnt vmcnt({4*(D-1)})")
            trreads()
            muls()
            lds_next()
            cvts()
            a("s_cselect_b64 exec, -1, 1")
            a("s_waitcnt lgkmcnt(3)")
            dma(vDa)
            a("s_mov_b64 exec, -1")
            ring()
            a(f"v_add_u32 v{vTr}, m0, v{vTrL}")
        else:
            a("s_waitcnt lgkmcnt(0)")
            amfma()
            for i in range(4):
                a(f"v_add_u32 v{vDa+i}, v{vWn+i}, v{vOff}")
            a(f"ds_read_b128 {vr(vWn,4)}, v{vPW}")
            a(f"v_add_u32 v{vPS}, v{vPS}, v{vStep}")
            a(f"v_add_u32 v{vPW}, 32, v{vPW}")
            a(f"v_add_u32 v{vPE}, v{vPE}, v{v128}")
            a(f"s_add_u32 s{sPos}, s{sPos}, 8")
            a(f"s_cmp_lt_i32 s{sPos}, s{sLim}")
            muls()
            lds_next()
            cvts()
            a(f"s_waitcnt vmcnt({4*(D-1)})")
            trreads()
            a("s_cselect_b64 exec, -1, 1")
            a("s_waitcnt lgkmcnt(0)")
            dma(vDa)
            a("s_mov_b64 exec, -1")
            ring()
            a(f"v_add_u32 v{vTr}, m0, v{vTrL}")
        a(f"s_cmp_gt_u32 s{sEnd}, s{sPos}")
        a(f"s_cbranch_scc1 K2_M{j}")
        a.label(f"K2_B{j}")
        a(f"s_sub_u32 s3, s{sPos}, s{sEnd}")
        a(f"s_add_u32 s{sI}, s{sI}, {4 if j == 4 else 1}")
        a(f"v_cmp_lt_u32 {sr(sMA,2)}, s3, v{vRA}")
        a(f"v_cmp_lt_u32 {sr(sMB,2)}, s3, v{vRB}")
        a(f"v_readlane_b32 s{sEnd}, v{vEnd}, s{sI}")
        for i in range(4):
            a(f"v_cndmask_b32 v{vTm+i}, 0, v{vT+i}, {sr(sMA if i < 2 else sMB,2)}")
        for i in range(4):
            a(f"v_xor_b32 v{vT+i}, v{vT+i}, v{vTm+i}")
        mains(j, vTm)
        if j == 4:
            a(f"s_cmp_gt_u32 s{sI}, {8*P}")
            a("s_cbranch_scc1 K2_DONE")
            if o.prio == 1:
                for ph in range(1, P):
                    a(f"s_cmp_lg_u32 s{sI}, {8*ph+1}")
                    a(f"s_cbranch_scc1 K2_PR{ph}")
                    a(f"s_setprio {P-1-ph}")
                    a.label(f"K2_PR{ph}")
            if o.prio == 3:
                a(f"s_cmp_lg_u32 s{sI}, {8*(P//2)+1}")
                a(f"s_cbranch_scc1 K2_PR1")
                a(f"s_setprio 0")
                a.label(f"K2_PR1")
        a(f"s_cmp_gt_u32 s{sEnd}, s{sPos}")
        a(f"s_cbranch_scc0 K2_B{(j+1)%5}")
        if j == 4 or o.align: a(f"s_branch K2_M{(j+1)%5}")

    a.label("K2_GOSLOW")
    a(f"s_max_u32 s{sMaxc}, s{sT0}, 32")
    a(f"s_mov_b32 s{sSlow}, 1")
    a(f"s_mov_b32 s{sHalf}, 1")
    for i in range(80):
        a(f"v_mov_b32 v{vAcc+i}, 0")
    a("s_waitcnt vmcnt(0) lgkmcnt(0)")
    a("s_barrier")
    a("s_branch K2_BATCH")

    a.label("K2_SLOWNEXT")
    a("s_waitcnt vmcnt(0) lgkmcnt(0)")
    a("s_barrier")
    a(f"s_add_u32 s{sHalf}, s{sHalf}, 1")
    a(f"s_cmp_le_u32 s{sHalf}, 2")
    a("s_cbranch_scc1 K2_BATCH")
    a(f"s_mov_b32 s{sHalf}, 1")
    a(f"s_add_u32 s{sWin}, s{sWin}, 1")
    a(f"s_lshl_b32 s{sT0}, s{sWin}, 4")
    a(f"s_cmp_lt_u32 s{sT0}, s{sMaxc}")
    a("s_cbranch_scc1 K2_BATCH")
    a("s_branch K2_EPI")

    a.label("K2_DONE")
    st.clk(76)
    st("loop")
    a(f"s_cmp_lg_u32 s{sSlow}, 0")
    a("s_cbranch_scc1 K2_SLOWNEXT")
    a.label("K2_EPI")
    e = 44; eP = 48; eB = 58; eD = 2
    a(f"v_and_b32 v{e+1}, 15, v{vLane}")
    a(f"v_lshrrev_b32 v{e+2}, 4, v{vLane}")
    a(f"v_lshl_add_u32 v{e}, v{vLane}, 3, s{sRB}")
    a(f"v_lshlrev_b32 v{e+3}, 7, v{e+1}")
    a(f"v_lshl_add_u32 v{e+3}, v{e+2}, 4, v{e+3}")
    a(f"v_add_u32 v{e+3}, s{sRB}, v{e+3}")
    def red(j):
        for tt in range(4):
            ac = vAcc + 16 * j + 4 * tt
            a(f"v_pk_mul_f32 {vr(ac,2)}, {vr(ac,2)}, {vr(vWr+4*tt,2)}")
        for tt in range(4):
            ac = vAcc + 16 * j + 4 * tt
            a(f"v_pk_fma_f32 {vr(ac,2)}, {vr(ac+2,2)}, {vr(vWr+4*tt+2,2)}, {vr(ac,2)}")
        for tt in range(4):
            ac = vAcc + 16 * j + 4 * tt
            a(f"v_add_f32 v{ac}, v{ac}, v{ac+1}")
        ac = vAcc + 16 * j
        a(f"v_cvt_pk_bf16_f32 v{eP+2*j}, v{ac}, v{ac+4}")
        a(f"v_cvt_pk_bf16_f32 v{eP+2*j+1}, v{ac+8}, v{ac+12}")
        if j == 0: a("s_waitcnt vmcnt(0) lgkmcnt(0)")
        a(f"ds_write_b64 v{e}, {vr(eP+2*j,2)} offset:{512*j}")
    def frag(hh):
        for s2_ in range(2):
            a(f"ds_read_b128 {vr(eB+8*hh+4*s2_,4)}, v{e+3} offset:{2048*hh + 64*s2_}")
    for j in range(4): red(j)
    frag(0)
    red(4)
    frag(1)
    a(f"v_lshrrev_b32 v{e}, 2, v{e+1}")
    a(f"s_add_u32 s3, s{sN0}, s{sWv}")
    a(f"v_lshl_add_u32 v{e}, v{e}, 3, s3         ; node")
    a(f"v_and_b32 v{e+1}, 3, v{e+1}")
    a(f"v_lshlrev_b32 v{e+1}, 7, v{e+1}")
    a(f"v_lshl_add_u32 v{e+1}, v{e+2}, 4, v{e+1}")
    a(f"v_lshl_add_u32 v{e+1}, v{e}, 9, v{e+1}")
    a(f"v_add_u32 v{e+2}, {32*512}, v{e+1}")
    a(f"s_add_u32 s3, s3, 32")
    a(f"s_cmp_lt_u32 s3, s{sN1}")
    a(f"s_cselect_b32 s{sT0}, 0x000f000f, 0")
    a(f"s_mov_b32 s{sT1}, s{sT0}")
    stm = FL[o.k2st]
    for hh in range(2):
        a(f"s_waitcnt lgkmcnt({3 - 3*hh})")
        for s2_ in range(2):
            for tp in range(4):
                d_ = vr(eD + 16 * hh + 4 * tp, 4)
                c_ = "0" if s2_ == 0 else d_
                a(f"v_mfma_f32_16x16x32_bf16 {d_}, {vr(vWo+(tp*2+s2_)*4,4)}, {vr(eB+8*hh+4*s2_,4)}, {c_}")
    for hh in range(2):
        for i in range(8):
            a(f"v_cvt_pk_bf16_f32 v{74+8*hh+i}, v{eD+16*hh+2*i}, v{eD+16*hh+2*i+1}")
        if hh == 1:
            a(f"s_mov_b64 exec, {sr(sT0,2)}")
            a("s_cbranch_execz K2_FIN")
        a(f"global_store_dwordx4 v{e+1+hh}, {vr(74+8*hh,4)}, {sr(sOUT,2)}{stm}")
        a(f"global_store_dwordx4 v{e+1+hh}, {vr(78+8*hh,4)}, {sr(sOUT,2)} offset:64{stm}")
    a.label("K2_FIN")
    st("epi")
    if o.ts:
        a("s_waitcnt vmcnt(0)")
    st("end")
    st.dump(sWS, 2)
    a.label("K2_END")
    a("s_endpgm")
    return dict(lds=LDS, vgpr=NV, threads=NT, cap=CAP)

def kd(name, vgpr):
    v = (vgpr + 7) // 8 * 8
    return f""".amdhsa_kernel {name}
  .amdhsa_next_free_vgpr {v}
  .amdhsa_next_free_sgpr 102
  .amdhsa_accum_offset {v}
  .amdhsa_group_segment_fixed_size 0
  .amdhsa_kernarg_size 88
  .amdhsa_user_sgpr_count 2
  .amdhsa_user_sgpr_kernarg_segment_ptr 1
  .amdhsa_system_sgpr_workgroup_id_x 1
  .amdhsa_float_denorm_mode_32 3
.end_amdhsa_kernel
"""

def main():
    p = argparse.ArgumentParser()
    p.add_argument("-o", default="out.s")
    p.add_argument("--D", type=int, default=2)
    p.add_argument("--D0", type=int, default=-1)
    p.add_argument("--P", type=int, default=4)
    p.add_argument("--ts", type=int, default=0)
    p.add_argument("--k1ld", default="nt")
    p.add_argument("--k1st", default="plain")
    p.add_argument("--k2st", default="plain")
    p.add_argument("--k1ord", default="d/sh/e")
    p.add_argument("--psched", default="3,1,1,2,1")
    p.add_argument("--ipf", type=int, default=0)
    p.add_argument("--mall", type=int, default=0)
    p.add_argument("--pf", type=int, default=0)
    p.add_argument("--touchfirst", type=int, default=0)
    p.add_argument("--cpf", type=int, default=1)
    p.add_argument("--prio", type=int, default=0)
    p.add_argument("--align", type=int, default=0)
    p.add_argument("--capmax", type=int, default=3200)
    p.add_argument("--abl", default="")
    p.add_argument("--pk", type=int, default=0)
    p.add_argument("--sched", type=int, default=1)
    p.add_argument("--pad", type=int, default=0)
    o = p.parse_args()
    o.abl = o.abl.split(",")
    a = Asm()
    i1 = gen_k1(a, o)
    i2 = gen_k2(a, o)
    body = a.text()
    n = check(body)
    out = HDR
    out += f"; @launch kernel=bucket_kernel grid=({NCH},1,1) block=({i1['threads']},1,1) lds={i1['lds']}\n"
    out += f"; @launch kernel=gather_kernel grid=({NCH},1,1) block=({i2['threads']},1,1) lds={i2['lds']}\n"
    out += '.amdgcn_target "amdgcn-amd-amdhsa--gfx950"\n.text\n'
    out += ".globl bucket_kernel\n.type bucket_kernel,@function\n.globl gather_kernel\n.type gather_kernel,@function\n"
    out += body
    out += '.section .rodata,"a"\n.p2align 6\n' + kd("bucket_kernel", i1["vgpr"]) + ".p2align 6\n" + kd("gather_kernel", i2["vgpr"])
    open(o.o, "w").write(out)
    print(f"wrote {o.o}: k2 {i2} hazards {n}", file=sys.stderr)

if __name__ == "__main__":
    main()
```

```python
import sys, argparse
from asmlib import Asm, vr, sr, check

HDR = """; Kernarg layout for this problem (88 bytes, ptrs only, base s[0:1]):
"""

NCH = 256
CS = 2560
IDX_OFF = 0x40000
PAY_OFF = 0x300000
TS_OFF = 0x1000000
MAGIC = 429497
XBYTES = 5120000
FL = {"plain": "", "nt": " nt", "sc1": " sc1", "sc0sc1": " sc0 sc1", "ntsc1": " sc1 nt", "sc0": " sc0"}

def dpp_scan(a, v):
    for sh in (1, 2, 4, 8):
        a("s_nop 1")
        a(f"v_add_u32_dpp {v}, {v}, {v} row_shr:{sh} row_mask:0xf bank_mask:0xf bound_ctrl:0")
    a("s_nop 1")
    a(f"v_add_u32_dpp {v}, {v}, {v} row_bcast:15 row_mask:0xa bank_mask:0xf")
    a("s_nop 1")
    a(f"v_add_u32_dpp {v}, {v}, {v} row_bcast:31 row_mask:0xc bank_mask:0xf")

ENC = [None, 0]
class Stamps:
    def __init__(self, a, on, regs, kidx):
        self.a = a; self.on = on; self.regs = regs; self.n = 0; self.kidx = kidx; self.clks = []
    def __call__(self, name=""):
        if ENC[0]:
            if f"{self.kidx+1}{name}" == ENC[0]:
                self.a(f"s_memrealtime {sr(self.regs[1], 2)}")
                self.a("s_waitcnt lgkmcnt(0)")
            return
        if not self.on: return
        self.a(f"s_memrealtime {sr(self.regs[self.n], 2)}")
        self.a("s_waitcnt lgkmcnt(0)")
        self.n += 1
    def clk(self, reg):
        if not self.on: return
        self.a(f"s_memtime {sr(reg, 2)}")
        self.clks.append(reg)
    def dump(self, sws, vt):
        if not self.on: return
        a = self.a
        a("s_mov_b64 exec, -1")
        a(f"v_lshrrev_b32 {vr(vt)}, 6, v0")
        a(f"s_lshl_b32 s3, s2, 4")
        a(f"s_add_u32 s3, s3, {self.kidx*256*16}")
        a(f"v_add_u32 {vr(vt)}, s3, {vr(vt)}")
        a(f"v_lshlrev_b32 {vr(vt)}, 6, {vr(vt)}")
        a(f"v_add_u32 {vr(vt)}, {TS_OFF}, {vr(vt)}")
        a("s_mov_b64 exec, 1")
        for i in range(self.n):
            a(f"v_mov_b32 {vr(vt+1)}, {sr(self.regs[i])}")
            a(f"global_store_dword {vr(vt)}, {vr(vt+1)}, {sr(sws,2)} offset:{4*i}")
        for i, r in enumerate(self.clks):
            a(f"v_mov_b32 {vr(vt+1)}, {sr(r)}")
            a(f"global_store_dword {vr(vt)}, {vr(vt+1)}, {sr(sws,2)} offset:{4*(14+i)}")

def gen_k1(a, o):
    HIST, BASE, IDXS, PAYS = 0, 1024, 2048, 12288
    st = Stamps(a, o.ts, list(range(60, 90, 2)), 0)
    ldm = FL[o.k1ld]; stm = FL[o.k1st]
    a(".p2align 8")
    a.label("bucket_kernel")
    a(f"s_cmp_ge_u32 s2, {NCH}")
    a("s_cbranch_scc1 K1_END")
    if ENC[0]:
        a("s_memrealtime s[60:61]")
        a("s_memrealtime s[62:63]")
    a("s_load_dwordx8 s[8:15], s[0:1], 8")
    a("s_load_dwordx2 s[16:17], s[0:1], 80     ; ws")
    a("s_load_dwordx2 s[18:19], s[0:1], 0      ; x")
    if o.cpf:
        a("s_getpc_b64 s[4:5]")
        a.label("K1_PC")
        a("v_lshlrev_b32 v68, 7, v0")
        a("v_cmp_gt_u32 vcc, K2_END-K1_PC, v68")
        a("s_mov_b64 exec, vcc")
        a("s_cbranch_execz K1_NOCPF")
        a("global_load_dword v69, v68, s[4:5]")
        a.label("K1_NOCPF")
        a("s_mov_b64 exec, -1")
    a("s_mul_i32 s3, s2, 625")
    a("s_add_u32 s24, s3, 625")
    a("s_lshr_b32 s3, s3, 2")
    a("s_lshr_b32 s24, s24, 2")
    a("s_sub_u32 s24, s24, s3")
    a("s_lshl_b32 s24, s24, 2")
    a("s_lshl_b32 s3, s3, 6")
    a("v_lshl_add_u32 v1, v0, 3, s3")
    a("s_lshl_b32 s25, s24, 3")
    a("v_add_u32 v48, s25, v1")
    a("v_lshlrev_b32 v3, 2, v0")
    a("v_mov_b32 v45, 0")
    a("ds_write_b32 v3, v45")
    a("v_cmp_gt_u32 s[20:21], s24, v0")
    a("v_lshlrev_b32 v2, 1, v1")
    a("v_lshlrev_b32 v49, 1, v48")
    a("s_mov_b64 exec, s[20:21]")
    a("s_waitcnt lgkmcnt(0)")
    st("start")
    def ld(nm):
        if nm == "d":
            a(f"global_load_dwordx2 v[4:5], v1, s[10:11]{ldm}"); a(f"global_load_dwordx2 v[6:7], v48, s[10:11]{ldm}")
        if nm == "s":
            a(f"global_load_dwordx2 v[8:9], v1, s[8:9]{ldm}"); a(f"global_load_dwordx2 v[10:11], v48, s[8:9]{ldm}")
        if nm == "h":
            a(f"global_load_dwordx4 v[12:15], v2, s[12:13]{ldm}"); a(f"global_load_dwordx4 v[16:19], v49, s[12:13]{ldm}")
        if nm == "e":
            a(f"global_load_dwordx4 v[20:23], v2, s[14:15]{ldm}"); a(f"global_load_dwordx4 v[24:27], v49, s[14:15]{ldm}")
    g0, g1, g2 = o.k1ord.split("/")
    assert (g0 + g1 + g2) == "dshe"
    for c in g0: ld(c)
    a(f"s_mov_b32 s22, {MAGIC}")
    a("s_movk_i32 s23, 625")
    a("v_mov_b32 v45, 1")
    a("s_barrier")
    for c in g1: ld(c)
    a(f"s_waitcnt vmcnt({2*(len(g0)+len(g1)) - 2})")
    st("dst")
    for i in range(4):
        a(f"v_mul_u32_u24 v{28+i}, s22, v{4+i}")
    for i in range(4):
        a(f"v_lshrrev_b32 v{36+i}, 24, v{28+i}       ; bucket")
    for i in range(4):
        a(f"v_lshlrev_b32 v{28+i}, 2, v{36+i}")
        a(f"ds_add_rtn_u32 v{32+i}, v{28+i}, v45 offset:{HIST}")
    for c in g2: ld(c)
    a("s_mov_b64 exec, -1")
    a("v_and_b32 v46, 63, v0")
    a("v_lshlrev_b32 v46, 4, v46")
    a("s_waitcnt lgkmcnt(0)")
    a("s_barrier")
    a(f"ds_read_b128 v[50:53], v46 offset:{HIST}")
    for i in range(4):
        a(f"v_mad_u32_u24 v{36+i}, v{36+i}, s23, 15")
    for i in range(4):
        a(f"v_lshrrev_b32 v{36+i}, 4, v{36+i}")
    for i in range(4):
        a(f"v_sub_u32 v{4+i}, v{4+i}, v{36+i}")
    a("s_waitcnt lgkmcnt(0)")
    a("v_add_u32 v42, v50, v51")
    a("v_add_u32 v43, v42, v52")
    a("v_add_u32 v44, v43, v53")
    a("v_mov_b32 v47, v44")
    fill = []
    for i in range(4):
        fill += [f"v_and_b32 v{36+i}, 7, v{4+i}", f"v_lshrrev_b32 v{4+i}, 3, v{4+i}", f"v_lshl_or_b32 v{4+i}, v{36+i}, 5, v{4+i}"]
    steps = [f"row_shr:{s} row_mask:0xf bank_mask:0xf bound_ctrl:0" for s in (1, 2, 4, 8)] + \
            ["row_bcast:15 row_mask:0xa bank_mask:0xf", "row_bcast:31 row_mask:0xc bank_mask:0xf"]
    for k, s in enumerate(steps):
        a(fill[2*k]); a(fill[2*k+1])
        a(f"v_add_u32_dpp v47, v47, v47 {s}")
    a("v_sub_u32 v40, v47, v44")
    a("v_add_u32 v41, v40, v50")
    a("v_add_u32 v42, v40, v42")
    a("v_add_u32 v43, v40, v43")
    a(f"ds_write_b128 v46, v[40:43] offset:{BASE}")
    a("s_mov_b64 exec, s[20:21]")
    for i in range(4):
        a(f"ds_read_b32 v{36+i}, v{28+i} offset:{BASE}")
    a("s_mov_b64 exec, -1")
    a("v_lshrrev_b32 v54, 6, v0")
    a("s_and_b32 s3, s2, 7")
    a("s_lshl_b32 s3, s3, 5")
    a("v_readfirstlane_b32 s26, v54")
    a("s_lshr_b32 s25, s2, 3")
    a("s_add_u32 s3, s3, s25")
    a("s_lshl_b32 s3, s3, 2")
    a("s_cmp_lg_u32 s26, 9")
    a("s_cbranch_scc1 K1_NOTAB")
    a("v_lshl_add_u32 v47, v46, 8, s3")
    for i in range(4):
        a(f"v_lshl_or_b32 v{50+i}, v{50+i}, 16, v{40+i}")
        a(f"global_store_dword v47, v{50+i}, s[16:17] offset:{1024*i}")
    a.label("K1_NOTAB")
    a("s_mov_b64 exec, s[20:21]")
    a("s_waitcnt vmcnt(4)")
    if o.P > 1:
        a(f"s_mov_b32 s22, {(o.P << 24) // 10000}")
        for i in range(4):
            a(f"v_mul_u32_u24 v{40+i}, s22, v{8+i}")
        for i in range(4):
            a(f"v_lshrrev_b32 v{40+i}, 24, v{40+i}")
        for i in range(4):
            a(f"v_lshl_or_b32 v{4+i}, v{40+i}, 3, v{4+i}")
    for i in range(4):
        a(f"v_lshl_or_b32 v{4+i}, v{8+i}, 9, v{4+i}")
    a("s_waitcnt lgkmcnt(0)")
    for i in range(4):
        a(f"v_add_u32 v{8+i}, v{36+i}, v{32+i}")
    for i in range(4):
        a(f"v_lshlrev_b32 v{28+i}, 2, v{8+i}")
        a(f"ds_write_b32 v{28+i}, v{4+i} offset:{IDXS}")
    for i in range(4):
        a(f"v_lshlrev_b32 v{8+i}, 4, v{8+i}")
    st("pos")
    a("s_mov_b64 exec, -1")
    a("v_lshlrev_b32 v1, 4, v0")
    a(f"s_mul_i32 s3, s2, {CS*4}")
    a(f"s_add_u32 s3, s3, {IDX_OFF}")
    a("v_add_u32 v2, s3, v1")
    a(f"s_mul_i32 s3, s2, {CS*16}")
    a(f"s_add_u32 s3, s3, {PAY_OFF}")
    a("v_add_u32 v3, s3, v1")
    a("v_add_u32 v4, 10240, v3")
    a("v_add_u32 v5, 20480, v3")
    a("v_add_u32 v6, 30720, v3")
    if o.mall:
        a(f"s_mul_i32 s3, s2, {XBYTES//NCH}")
        a(f"v_lshl_add_u32 v7, v0, 7, s3")
        a(f"v_cmp_gt_u32 vcc, {(XBYTES//NCH + 127) >> 7}, v0")
        a("s_mov_b64 s[28:29], vcc")
    if o.pf:
        sl = o.pf // 32
        a("s_lshr_b32 s3, s2, 3")
        a(f"s_mul_i32 s3, s3, {sl}")
        a(f"v_lshl_add_u32 v40, v0, 7, s3")
        a(f"v_cmp_gt_u32 vcc, {(sl + 127) >> 7}, v0")
        a("s_mov_b64 s[30:31], vcc")
    a("s_lshl_b32 s25, s24, 2")
    a("s_sub_u32 s25, s25, 1920")
    a("v_cmp_gt_u32 s[26:27], s25, v0")
    a("s_mov_b64 exec, s[20:21]")
    a("s_waitcnt vmcnt(2)")
    for i in range(4):
        a(f"ds_write_b64 v{8+i}, v[{12+2*i}:{13+2*i}] offset:{PAYS}")
    a("s_waitcnt vmcnt(1)")
    for i in range(2):
        a(f"ds_write_b64 v{8+i}, v[{20+2*i}:{21+2*i}] offset:{PAYS+8}")
    a("s_waitcnt vmcnt(0)")
    st("allin")
    for i in range(2, 4):
        a(f"ds_write_b64 v{8+i}, v[{20+2*i}:{21+2*i}] offset:{PAYS+8}")
    a("s_mov_b64 exec, -1")
    a("s_waitcnt lgkmcnt(0)")
    a("s_barrier")
    st("staged")
    for j in range(4):
        a(f"ds_read_b128 v[{52+4*j}:{55+4*j}], v1 offset:{PAYS + 10240*j}")
    a(f"ds_read_b128 v[48:51], v1 offset:{IDXS}")
    def touches():
        if o.mall:
            a("s_mov_b64 exec, s[28:29]")
            a("s_cbranch_execz K1_NOMALL")
            a("global_load_dword v8, v7, s[18:19]")
            a.label("K1_NOMALL")
        if o.pf:
            a("s_mov_b64 exec, s[30:31]")
            a("s_cbranch_execz K1_NOPF")
            a("global_load_dword v10, v40, s[18:19]")
            a.label("K1_NOPF")
        a("s_mov_b64 exec, -1")
    if o.touchfirst: touches()
    for j in range(4):
        a(f"s_waitcnt lgkmcnt({4-j})")
        if j == 3: a("s_mov_b64 exec, s[26:27]")
        a(f"global_store_dwordx4 v{3+j}, v[{52+4*j}:{55+4*j}], s[16:17]{stm}")
    a("s_mov_b64 exec, s[20:21]")
    a("s_waitcnt lgkmcnt(0)")
    a(f"global_store_dwordx4 v2, v[48:51], s[16:17]{stm}")
    if not o.touchfirst: touches()
    st("issued")
    if o.ts:
        a("s_waitcnt vmcnt(0)")
        st("done")
    st.dump(16, 30)
    if ENC[0]:
        if ENC[0] == "1done":
            a("s_waitcnt vmcnt(0)"); st("done")
        a(f"v_cmp_eq_u32 vcc, 0, v0")
        a(f"s_cmp_eq_u32 s2, {ENC[1]}")
        a("s_cselect_b64 exec, vcc, 0")
        a("s_cbranch_execz K1_END")
        a("v_mov_b32 v30, s60"); a("v_mov_b32 v31, s62"); a(f"v_mov_b32 v32, {TS_OFF}")
        a("global_store_dwordx2 v32, v[30:31], s[16:17]")
    a.label("K1_END")
    a("s_endpgm")
    return dict(lds=12288 + 40960, vgpr=72, threads=640)

def gen_k2(a, o):
    NW = 8; NT = 512; NR = 8; D = o.D; P = o.P
    PO = [0, 1056, 2080, 3136]
    SLOT = 4160; WR = D * SLOT; RING = NW * WR
    HIST = 0; MISC = 1024; BASE = 2048
    PS = 1056
    WOL = RING; ZERO = WOL + 8 * PS; CONST = ZERO + 128; WOFF = CONST + 512
    CAP = min(((163840 - WOFF) // 20) // 8 * 8, o.capmax)
    POFF = WOFF + CAP * 4
    LDS = POFF + CAP * 16
    assert LDS <= 163840 and POFF % 16 == 0 and WOFF % 16 == 0
    TAILW = 8 * (D + 2)
    assert 4 * NT + 56 + TAILW <= CAP
    DUMMY = 0x3fff << 9
    st = Stamps(a, o.ts, list(range(52, 70, 2)) + [78, 80, 82, 84], 1)
    sX, sCG, sWR, sWO, sOUT, sWS = 4, 8, 10, 12, 14, 16
    sB, sN0, sN1, sWv = 18, 19, 20, 21
    sIDX, sPAY = 22, 24
    sSlow, sWin, sHalf, sMaxc = 26, 27, 28, 29
    sPos, sEnd, sI, sLim, sT0, sT1, sRB, sRE = 30, 31, 32, 33, 34, 35, 36, 37
    sAny = 38
    sXS = 40
    sWS4 = 44
    sSO = 48
    sTot = 51
    sWOFF, sPOFF = 6, 7
    sRM = 70
    sMA, sMB = 70, 72
    def mk0(r): return sr(sRM + 2 * r, 2)
    def mk1(r): return sr(sRM + 16 + 2 * r, 2)
    vEnt, vRb, vPo, vW0, vW1, vRk0, vRk1, vP0, vP1, t = 2, 10, 18, 26, 34, 42, 50, 58, 90, 122
    vKa = 136
    vCg = 152; vWn = 154; vEnd = 158
    vPS, vPE, vPW, vTr = 159, 160, 161, 162
    vLane, vOff, vTrL, vStep, vLW, vLS, vLE, vLive, vRA, vRB, v128 = range(164, 175)
    vAcc = 176
    vX, vD, vT, vTm, vSh, vEa, vDa = 2, 18, 26, 30, 34, 38, 40
    vEb = 132
    vWo = 90; vWr = 136
    NV = 256

    def tab_loads():
        a(f"global_load_dwordx4 {vr(vEnt,4)}, v{t+6}, {sr(sWS,2)}")
        a(f"global_load_dwordx4 {vr(vEnt+4,4)}, v{t+6}, {sr(sWS,2)} offset:16")
    def tab_addr():
        a(f"v_lshrrev_b32 v1, 4, v0")
        a(f"s_lshl_b32 s3, s{sB}, 10")
        a(f"v_lshl_add_u32 v{t+6}, v1, 5, s3")
    def clear_hist():
        a(f"v_mov_b32 v{t}, 0")
        a(f"v_lshlrev_b32 v{t+5}, 2, v0")
        a(f"ds_write_b32 v{t+5}, v{t}")

    a(".p2align 8")
    a.label("gather_kernel")
    a(f"s_cmp_ge_u32 s2, {NCH}")
    a("s_cbranch_scc1 K2_END")
    if ENC[0] == "2entry": a("s_memrealtime s[54:55]")
    a(f"s_load_dwordx2 {sr(sWS,2)}, s[0:1], 80")
    a(f"s_load_dwordx8 s[8:15], s[0:1], 40")
    a(f"s_load_dwordx2 {sr(sX,2)}, s[0:1], 0")
    a(f"s_and_b32 s{sB}, s2, 7")
    a(f"s_lshl_b32 s{sB}, s{sB}, 5")
    a(f"s_lshr_b32 s3, s2, 3")
    a(f"s_add_u32 s{sB}, s{sB}, s3              ; bucket")
    a(f"v_lshrrev_b32 v1, 6, v0")
    a(f"v_and_b32 v{vLane}, 63, v0")
    a(f"v_readfirstlane_b32 s{sWv}, v1")
    tab_addr()
    if o.ipf:
        a(f"s_and_b32 s3, s2, 0xf8")
        a(f"s_add_u32 s3, s3, s{sWv}")
        a(f"s_mul_i32 s3, s3, {CS*4}")
        a(f"s_and_b32 s{sT0}, s2, 7")
        a(f"s_mul_i32 s{sT0}, s{sT0}, 1250")
        a(f"s_add_u32 s3, s3, s{sT0}")
        a(f"s_add_u32 s3, s3, {IDX_OFF - 64}")
        a(f"v_lshl_add_u32 v{t+7}, v{vLane}, 7, s3")
    a(f"s_mul_i32 s{sRB}, s{sWv}, {WR}")
    a(f"s_mov_b32 s{sWS4+2}, 8192")
    a(f"s_mov_b32 s{sWS4+3}, 0x20000")
    a("s_waitcnt lgkmcnt(0)")
    st("start")
    tab_loads()
    nx = 0
    if o.ipf:
        a(f"s_mov_b64 exec, {hex((1 << o.ipf) - 1)}")
        a(f"global_load_dword v175, v{t+7}, {sr(sWS,2)}")
        a("s_mov_b64 exec, -1")
        nx += 1
    a(f"s_mov_b32 s{sWS4}, s{sWO}")
    a(f"s_mov_b32 s{sWS4+1}, s{sWO+1}")
    clear_hist()
    a(f"v_and_b32 v{t+5}, 31, v0")
    a(f"v_lshlrev_b32 v{t+5}, 2, v{t+5}")
    a(f"v_add_u32 v{t+5}, {ZERO}, v{t+5}")
    a(f"ds_write_b32 v{t+5}, v{t}")
    a(f"s_mov_b32 s{sSlow}, 0")
    a(f"s_mov_b32 s{sWin}, 0")
    a(f"s_mov_b32 s{sHalf}, 0")
    a(f"s_add_u32 s{sIDX}, s{sWS}, {IDX_OFF}")
    a(f"s_addc_u32 s{sIDX+1}, s{sWS+1}, 0")
    a(f"s_add_u32 s{sPAY}, s{sWS}, {PAY_OFF}")
    a(f"s_addc_u32 s{sPAY+1}, s{sWS+1}, 0")
    a(f"s_mov_b32 s{sWOFF}, {WOFF}")
    a(f"s_mov_b32 s{sPOFF}, {POFF}")
    a("s_branch K2_BATCH0")

    a.label("K2_BATCH")
    tab_addr()
    tab_loads()
    clear_hist()
    a("s_waitcnt vmcnt(0)")

    a.label("K2_BATCH0")
    thL, thH, th1, l16 = t, t + 1, t + 2, t + 3
    a(f"v_and_b32 v{l16}, 15, v0")
    a(f"s_lshl_b32 s{sT0}, s{sWin}, 4           ; 16*window")
    a(f"s_cmp_eq_u32 s{sHalf}, 2")
    a(f"s_cselect_b32 s{sT1}, 0x10000, s{sT0}")
    a(f"v_add_u32 v{thL}, s{sT1}, v{l16}")
    a(f"s_cmp_eq_u32 s{sHalf}, 1")
    a(f"s_cselect_b32 s{sT1}, 0x10000, s{sT0}")
    a(f"v_add_u32 v{thH}, s{sT1}, v{l16}")
    a(f"s_cmp_eq_u32 s{sSlow}, 0")
    a(f"s_cselect_b32 s{sT1}, 16, 0x10000")
    a(f"v_add_u32 v{th1}, s{sT1}, v{l16}")
    a(f"v_lshrrev_b32 v1, 4, v{vLane}")
    a(f"v_lshl_add_u32 v1, v1, 6, s{sWv}")
    a(f"v_mul_u32_u24 v{vRb}, {CS}, v1")
    a(f"v_add3_u32 v{vRb}, v{vRb}, v{l16}, s{sT0}")
    for r in range(1, NR):
        a(f"v_add_u32 v{vRb+r}, {8*CS*r}, v{vRb}")
    a(f"s_waitcnt vmcnt({nx})")
    st("table")
    for r in range(NR):
        a(f"v_add_u32_sdwa v{vRb+r}, v{vEnt+r}, v{vRb+r} dst_sel:DWORD dst_unused:UNUSED_PAD src0_sel:WORD_0 src1_sel:DWORD")
        a(f"v_cmp_gt_u32_sdwa {mk0(r)}, v{vEnt+r}, v{thL if r < NR//2 else thH} src0_sel:WORD_1 src1_sel:DWORD")
        a(f"v_lshlrev_b32 v{vPo+r}, 2, v{vRb+r}")
        a(f"s_mov_b64 exec, {mk0(r)}")
        a(f"global_load_dword v{vW0+r}, v{vPo+r}, {sr(sIDX,2)}")
        a("s_mov_b64 exec, -1")
    for r in range(NR):
        a(f"v_cmp_gt_u32_sdwa {mk1(r)}, v{vEnt+r}, v{th1} src0_sel:WORD_1 src1_sel:DWORD")
        a(f"v_lshlrev_b32 v{vRb+r}, 4, v{vRb+r}")
    a(f"s_or_b64 {sr(sAny,2)}, {mk1(0)}, {mk1(1)}")
    for r in range(2, NR):
        a(f"s_or_b64 {sr(sAny,2)}, {sr(sAny,2)}, {mk1(r)}")
    a("s_cbranch_scc0 K2_NOW1A")
    for r in range(NR):
        a(f"s_mov_b64 exec, {mk1(r)}")
        a(f"s_cbranch_execz K2_W1A_{r}")
        a(f"global_load_dword v{vW1+r}, v{vPo+r}, {sr(sIDX,2)} offset:64")
        a(f"global_load_dwordx4 {vr(vP1+4*r,4)}, v{vRb+r}, {sr(sPAY,2)} offset:256")
        a.label(f"K2_W1A_{r}")
    a.label("K2_NOW1A")
    a("s_waitcnt lgkmcnt(0)")
    a("s_barrier")
    sched = [int(x) for x in o.psched.split(",")]
    assert sum(sched) == NR and len(sched) == 5
    pr = [0]
    def pay(n):
        for _ in range(n):
            r = pr[0]; pr[0] += 1
            a(f"s_mov_b64 exec, {mk0(r)}")
            a(f"global_load_dwordx4 {vr(vP0+4*r,4)}, v{vRb+r}, {sr(sPAY,2)}")
        if n: a("s_mov_b64 exec, -1")
    a("s_mov_b64 exec, -1")
    pay(sched[0])
    st("issued")
    one, two = t + 4, t + 5
    a(f"v_mov_b32 v{t+7}, {MISC}")
    a(f"s_cmp_eq_u64 {sr(sAny,2)}, 0")
    a("s_cbranch_scc1 K2_NOMAX")
    a(f"v_max3_u32 v{t+8}, v{vEnt}, v{vEnt+1}, v{vEnt+2}")
    a(f"v_max3_u32 v{t+8}, v{t+8}, v{vEnt+3}, v{vEnt+4}")
    a(f"v_max3_u32 v{t+8}, v{t+8}, v{vEnt+5}, v{vEnt+6}")
    a(f"v_max_u32 v{t+8}, v{t+8}, v{vEnt+7}")
    a(f"v_lshrrev_b32 v{t+8}, 16, v{t+8}")
    a(f"v_cmp_lt_u32 vcc, 32, v{t+8}")
    a("s_mov_b64 exec, vcc")
    a(f"ds_max_u32 v{t+7}, v{t+8}")
    a("s_mov_b64 exec, -1")
    a.label("K2_NOMAX")
    a(f"s_cmp_lg_u32 s{sSlow}, 0")
    a("s_cbranch_scc1 K2_NOSETUP")
    a(f"s_mul_i32 s{sN0}, s{sB}, 625")
    a(f"s_add_u32 s{sN1}, s{sN0}, 640")
    a(f"s_add_u32 s{sN0}, s{sN0}, 15")
    a(f"s_lshr_b32 s{sN0}, s{sN0}, 4")
    a(f"s_lshr_b32 s{sN1}, s{sN1}, 4")
    a(f"s_sub_u32 s{sXS}, s{sX}, {PO[3]}")
    a(f"s_subb_u32 s{sXS+1}, s{sX+1}, 0")
    a(f"s_mov_b32 s{sXS+2}, {XBYTES + PO[3]}")
    a(f"s_mov_b32 s{sXS+3}, 0x20000")
    for i in range(3): a(f"s_movk_i32 s{sSO+i}, {PO[3]-PO[i]}")
    if D == 2:
        a(f"s_add_u32 s{sRE}, s{sRB}, {SLOT}")
        a(f"s_xor_b32 s{sRE}, s{sRE}, s{sRB}")
    else:
        a(f"s_add_u32 s{sRE}, s{sRB}, {WR}")
    L = vLane; u, f, x_ = t + 8, t + 9, t + 10
    a(f"v_bfe_u32 v{f}, v{L}, 2, 2              ; (L>>2)&3")
    a(f"v_and_b32 v{u}, 3, v{L}                 ; L&3")
    a(f"v_lshrrev_b32 v{x_}, 4, v{L}            ; g")
    a(f"v_lshlrev_b32 v{vOff}, 7, v{f}")
    a(f"v_lshl_add_u32 v{vOff}, v{u}, 4, v{vOff}")
    a(f"v_and_b32 v{vTrL}, 1, v{x_}")
    a(f"v_lshl_add_u32 v{vOff}, v{vTrL}, 6, v{vOff}")
    a(f"v_add_u32 v{vTrL}, 1, v{x_}")
    a(f"v_lshrrev_b32 v{vTrL}, 1, v{vTrL}")
    a(f"v_lshlrev_b32 v{vTrL}, 5, v{vTrL}")
    a(f"v_lshl_add_u32 v{vTrL}, v{x_}, 10, v{vTrL}")
    a(f"v_lshl_add_u32 v{vTrL}, v{f}, 6, v{vTrL}")
    a(f"v_lshl_add_u32 v{vTrL}, v{u}, 3, v{vTrL}")
    a(f"v_lshrrev_b32 v{vLW}, 5, v{L}")
    a(f"v_lshl_add_u32 v{vLW}, v{vLW}, 4, s{sWOFF}")
    a(f"v_lshl_add_u32 v{vLE}, v{x_}, 4, s{sPOFF}")
    a(f"v_lshl_add_u32 v{vLE}, v{u}, 1, v{vLE}")
    a(f"v_add_u32 v{vLE}, 8, v{vLE}")
    a(f"v_cmp_eq_u32 {sr(sT0,2)}, v{u}, v{x_}")
    a(f"v_lshl_add_u32 v{f}, v{f}, 4, s{sPOFF}")
    a(f"v_mov_b32 v{vLS}, {ZERO}")
    a(f"v_cndmask_b32 v{vLS}, v{vLS}, v{f}, {sr(sT0,2)}")
    a(f"v_cndmask_b32 v{vLive}, 0, 16, {sr(sT0,2)}")
    a(f"v_lshlrev_b32 v{vStep}, 3, v{vLive}")
    a(f"v_sub_u32 v{vRA}, 8, v{x_}")
    a(f"v_sub_u32 v{vRB}, 4, v{x_}")
    a(f"v_mov_b32 v{v128}, 128")
    a.label("K2_NOSETUP")
    a(f"v_mov_b32 v{one}, 1")
    a(f"v_mov_b32 v{two}, 2")
    a(f"v_lshlrev_b32 v{t+6}, 4, v{vLane}")
    m1, m2 = t + 12, t + 13
    a(f"v_and_b32 v{m2}, 7, v{vLane}")
    a(f"v_cmp_lt_u32 vcc, 0, v{m2}")
    a(f"v_cmp_lt_u32 {sr(sT0,2)}, 1, v{m2}")
    a(f"s_lshl_b32 s3, s{sWv}, 7")
    a(f"v_cndmask_b32 v{m1}, 0, -1, vcc")
    a(f"v_cndmask_b32 v{m2}, 0, -1, {sr(sT0,2)}")
    a(f"v_lshl_add_u32 v{vEnd}, v{vLane}, 2, s3")
    a(f"s_waitcnt vmcnt({pr[0]})")
    st("idx")
    for r in range(NR):
        a(f"s_mov_b64 exec, {mk0(r)}")
        a(f"v_lshlrev_b32_sdwa v{vKa+r}, v{two}, v{vW0+r} dst_sel:DWORD dst_unused:UNUSED_PAD src0_sel:DWORD src1_sel:BYTE_0")
        a(f"ds_add_rtn_u32 v{vRk0+r}, v{vKa+r}, v{one} offset:{HIST}")
    a(f"s_cmp_eq_u64 {sr(sAny,2)}, 0")
    a("s_cbranch_scc1 K2_NOW1B")
    for r in range(NR):
        a(f"s_mov_b64 exec, {mk1(r)}")
        a(f"s_cbranch_execz K2_W1B_{r}")
        a(f"v_lshlrev_b32_sdwa v{vPo+r}, v{two}, v{vW1+r} dst_sel:DWORD dst_unused:UNUSED_PAD src0_sel:DWORD src1_sel:BYTE_0")
        a(f"ds_add_rtn_u32 v{vRk1+r}, v{vPo+r}, v{one} offset:{HIST}")
        a.label(f"K2_W1B_{r}")
    a.label("K2_NOW1B")
    a("s_mov_b64 exec, -1")
    pay(sched[1])
    a("s_waitcnt lgkmcnt(0)")
    a("s_barrier")
    st("hist")
    h = t; b = t + 8
    a(f"ds_read_b128 {vr(h,4)}, v{t+6} offset:{HIST}")
    a(f"ds_read_b32 v{t+7}, v{t+7}")
    pay(sched[2])
    for r in range(NR):
        a(f"v_and_b32 v{vW0+r}, 0xfffffe00, v{vW0+r}")
    a("s_waitcnt lgkmcnt(0)")
    s_, y, r8 = t + 4, t + 5, h + 1
    a(f"v_add_u32 v{b+2}, v{h}, v{h+1}")
    a(f"v_add_u32 v{b+3}, v{b+2}, v{h+2}")
    a(f"v_add_u32 v{h+3}, v{b+3}, v{h+3}")
    a(f"v_readfirstlane_b32 s{sT0}, v{t+7}")
    a("s_nop 0")
    a(f"v_and_b32_dpp v{y}, v{h+3}, v{m1} row_shr:1 row_mask:0xf bank_mask:0xf bound_ctrl:0")
    a(f"v_add_u32 v{s_}, v{h+3}, v{y}")
    a("s_nop 1")
    a(f"v_and_b32_dpp v{y}, v{s_}, v{m2} row_shr:2 row_mask:0xf bank_mask:0xf bound_ctrl:0")
    a(f"v_add_u32 v{s_}, v{s_}, v{y}")
    a("s_nop 1")
    a(f"v_add_u32_dpp v{s_}, v{s_}, v{s_} row_shr:4 row_mask:0xf bank_mask:0xa")
    a(f"v_add_u32 v{r8}, 7, v{s_}")
    a(f"v_and_b32 v{r8}, -8, v{r8}")
    a(f"v_sub_u32 v{b}, v{s_}, v{h+3}")
    a("s_nop 0")
    a(f"v_mov_b32_dpp v{y}, v{r8} row_newbcast:15 row_mask:0xf bank_mask:0xf")
    a(f"v_add_u32_dpp v{b}, v{r8}, v{b} row_newbcast:7 row_mask:0xf bank_mask:0xc")
    a("s_nop 0")
    a(f"v_add_u32_dpp v{y}, v{r8}, v{y} row_newbcast:7 row_mask:0xf bank_mask:0xf")
    a(f"v_sub_u32 v{b}, v{b}, v{y}")
    a("s_nop 0")
    a(f"v_add_u32_dpp v{y}, v{y}, v{y} row_bcast:15 row_mask:0xa bank_mask:0xf")
    a("s_nop 1")
    a(f"v_add_u32_dpp v{y}, v{y}, v{y} row_bcast:31 row_mask:0xc bank_mask:0xf")
    a(f"v_add_u32 v{b}, v{b}, v{y}")
    a(f"v_add_u32 v{b+1}, v{b}, v{h}")
    a(f"v_add_u32 v{b+2}, v{b}, v{b+2}")
    a(f"v_add_u32 v{b+3}, v{b}, v{b+3}")
    a(f"ds_write_b128 v{t+6}, {vr(b,4)} offset:{BASE}")
    for r in range(NR):
        a(f"s_mov_b64 exec, {mk0(r)}")
        a(f"ds_read_b32 v{vKa+r}, v{vKa+r} offset:{BASE}")
    a("s_mov_b64 exec, -1")
    a(f"ds_read_b32 v{vEnd}, v{vEnd} offset:{BASE}")
    a(f"v_readlane_b32 s{sTot}, v{y}, 63")
    a(f"s_cmp_lg_u32 s{sSlow}, 0")
    a("s_cbranch_scc1 K2_FEAS")
    a(f"s_cmp_gt_u32 s{sTot}, {CAP-TAILW}")
    a("s_cbranch_scc1 K2_GOSLOW")
    a(f"s_cmp_lg_u32 s{sT0}, 0")
    a("s_cbranch_scc1 K2_GOSLOW")
    a.label("K2_FEAS")
    pay(sched[3])
    a(f"s_cmp_eq_u64 {sr(sAny,2)}, 0")
    a("s_cbranch_scc1 K2_NOW1C")
    for r in range(NR):
        a(f"s_mov_b64 exec, {mk1(r)}")
        a(f"s_cbranch_execz K2_W1C_{r}")
        a(f"ds_read_b32 v{vPo+r}, v{vPo+r} offset:{BASE}")
        a(f"v_and_b32 v{vW1+r}, 0xfffffe00, v{vW1+r}")
        a("s_waitcnt lgkmcnt(0)")
        a(f"v_add_u32 v{vPo+r}, v{vPo+r}, v{vRk1+r}")
        a(f"v_lshl_add_u32 v{vRk1+r}, v{vPo+r}, 2, s{sWOFF}")
        a(f"v_lshl_add_u32 v{vPo+r}, v{vPo+r}, 4, s{sPOFF}")
        a(f"ds_write_b32 v{vRk1+r}, v{vW1+r}")
        a(f"ds_write_b128 v{vPo+r}, {vr(vP1+4*r,4)}")
        a.label(f"K2_W1C_{r}")
    a.label("K2_NOW1C")
    a("s_waitcnt lgkmcnt(0)")
    for r in range(NR):
        a(f"s_mov_b64 exec, {mk0(r)}")
        a(f"v_add_u32 v{vKa+r}, v{vKa+r}, v{vRk0+r}")
        a(f"v_lshl_add_u32 v{vRk0+r}, v{vKa+r}, 2, s{sWOFF}")
        a(f"ds_write_b32 v{vRk0+r}, v{vW0+r}")
    a("s_mov_b64 exec, -1")
    a(f"v_readlane_b32 s{sPos}, v{vEnd}, 0")
    a(f"v_readlane_b32 s{sLim}, v{vEnd}, 31")
    a(f"v_readlane_b32 s{sEnd}, v{vEnd}, 1")
    a(f"v_mov_b32 v{t+2}, {DUMMY}")
    a(f"s_sub_u32 s3, 0, s{sLim}")
    a(f"s_and_b32 s3, s3, 7")
    a(f"s_cmp_eq_u32 s{sWv}, {NW-1}")
    a(f"s_cselect_b32 s3, {TAILW}, s3")
    a(f"v_add_u32 v{t}, s{sLim}, v{vLane}")
    a(f"v_lshl_add_u32 v{t+1}, v{t}, 2, s{sWOFF}")
    a(f"v_lshl_add_u32 v{vPW}, s{sPos}, 2, v{vLW}")
    a(f"s_bfm_b64 exec, s3, 0")
    a(f"ds_write_b32 v{t+1}, v{t+2}")
    a("s_mov_b64 exec, -1")
    pay(sched[4])
    a(f"v_lshrrev_b32 v{t}, 4, v{vLane}          ; g")
    a(f"v_bfe_u32 v{t+1}, v{vLane}, 2, 2")
    a(f"v_lshlrev_b32 v{t+3}, 5, v{t}")
    a(f"v_lshl_add_u32 v{t+3}, v{t+1}, 1, v{t+3}")
    a(f"v_lshlrev_b32 v{t+2}, 4, v0")
    a("s_waitcnt lgkmcnt(0)")
    a("s_barrier")
    st("barA")
    vWi = vW1
    for d in range(D):
        a(f"ds_read_b128 {vr(vWi+4*d,4)}, v{vPW} offset:{32*d}")
    a(f"ds_read_b128 {vr(vWn,4)}, v{vPW} offset:{32*D}")
    for v_ in range(4):
        a(f"global_load_ushort v{t+4+v_}, v{t+3}, {sr(sCG,2)} offset:{8*v_}")
    for r in range(NR):
        a(f"v_lshl_add_u32 v{vKa+r}, v{vKa+r}, 4, s{sPOFF}")
    a(f"v_add_u32 v{vPW}, {32*(D+1)}, v{vPW}")
    a(f"v_mad_u32_u24 v{vPS}, v{vLive}, s{sPos}, v{vLS}")
    a(f"v_lshl_add_u32 v{vPE}, s{sPos}, 4, v{vLE}")
    a(f"s_mul_i32 s3, s{sWv}, {PS}")
    a(f"s_add_u32 m0, s3, {WOL}")
    a("s_nop 0")
    a(f"buffer_load_dwordx4 v{t+2}, {sr(sWS4,4)}, 0 offen lds")
    a(f"s_cmp_lg_u32 s{sWv}, 0")
    a("s_cbranch_scc1 K2_NOWR")
    a(f"s_mov_b32 m0, {CONST}")
    a("s_mov_b64 exec, 0xffffffff")
    a(f"global_load_lds_dwordx4 v{t+2}, {sr(sWR,2)}   ; w_r")
    a("s_mov_b64 exec, -1")
    a.label("K2_NOWR")
    a(f"s_mov_b32 m0, s{sRB}")
    a("s_waitcnt lgkmcnt(0)")
    for i in range(4 * D):
        a(f"v_add_u32 v{vWi+i}, v{vWi+i}, v{vOff}")
    def dma(src):
        for i in range(4):
            so = f"s{sSO+i}" if i < 3 else "0"
            a(f"buffer_load_dwordx4 v{src+i}, {sr(sXS,4)}, {so} offen offset:{PO[i]} lds")
    def dma0(d):
        a(f"s_add_u32 s3, s{sPos}, {8*d}")
        a(f"s_cmp_lt_u32 s3, s{sLim}")
        a("s_cselect_b64 exec, -1, 1")
        dma(vWi + 4 * d)
        a("s_mov_b64 exec, -1")
    D0 = o.D0 if o.D0 >= 0 else D
    for d in range(D0):
        dma0(d)
        a(f"s_add_u32 m0, m0, {SLOT}")
    st("dma0")
    for r in range(NR):
        a(f"s_waitcnt vmcnt({4*D0 + 5 + NR - 1 - r})")
        a(f"s_mov_b64 exec, {mk0(r)}")
        a(f"ds_write_b128 v{vKa+r}, {vr(vP0+4*r,4)}")
    a("s_mov_b64 exec, -1")
    for d in range(D0, D):
        dma0(d)
        a(f"s_add_u32 m0, m0, {SLOT}")
    a(f"s_cmp_lg_u32 s{sSlow}, 0")
    a("s_cbranch_scc1 K2_NOCLR")
    for i in range(0, 80, 2):
        a(f"v_pk_mul_f32 {vr(vAcc+i,2)}, 0, 0") if False else None
    for i in range(80):
        a(f"v_mov_b32 v{vAcc+i}, 0")
    a.label("K2_NOCLR")
    a(f"s_waitcnt vmcnt({4*D}) lgkmcnt(0)")
    a("s_barrier")
    st("barB")
    st.clk(74)
    a(f"s_mov_b32 m0, s{sRB}")
    def lds_next():
        a(f"ds_read2_b64 {vr(vSh,4)}, v{vPS} offset0:0 offset1:8")
        a(f"ds_read_u16_d16_hi v{vEa}, v{vPE}")
        a(f"ds_read_u16_d16_hi v{vEb}, v{vPE} offset:64")
    a(f"v_mov_b32 v{vEa}, 0")
    a(f"v_mov_b32 v{vEb}, 0")
    if o.ts: a("s_waitcnt lgkmcnt(0)")
    lds_next()
    a(f"v_lshl_or_b32 v{vCg}, v{t+5}, 16, v{t+4}")
    a(f"v_lshl_or_b32 v{vCg+1}, v{t+7}, 16, v{t+6}")
    a(f"v_and_b32 v{t+2}, 3, v{vLane}")
    a(f"v_lshlrev_b32 v{t+3}, 7, v{t+1}")
    a(f"v_lshl_add_u32 v{t+3}, v{t+2}, 3, v{t+3}")
    a(f"v_add_u32 v{t+3}, {CONST}, v{t+3}")
    for tt in range(4):
        a(f"ds_read_b64_tr_b16 {vr(vWr+4*tt+2,2)}, v{t+3} offset:{32*tt}")
    a(f"v_mul_u32_u24 v{t+3}, {2*PS}, v{t+1}")
    a(f"v_lshl_add_u32 v{t+3}, v{t}, 8, v{t+3}")
    a(f"v_lshl_add_u32 v{t+3}, v{t+2}, 4, v{t+3}")
    a(f"v_add_u32 v{t+3}, {WOL}, v{t+3}")
    fr = []
    for tp in range(4):
        for s2_ in range(2):
            for kp in range(2):
                off = s2_ * PS + kp * 128 + (tp >> 1) * 64 + (tp & 1) * 8
                fr.append(f"ds_read_b64_tr_b16 {vr(vWo + (tp*2+s2_)*4 + 2*kp, 2)}, v{t+3} offset:{off}")
    for x in fr[:8]: a(x)
    a("s_waitcnt lgkmcnt(8)")
    for tt in range(4):
        w = vWr + 4 * tt
        a(f"v_lshlrev_b32 v{w}, 16, v{w+2}")
        a(f"v_and_b32 v{w+1}, 0xffff0000, v{w+2}")
        a(f"v_lshlrev_b32 v{w+2}, 16, v{w+3}")
        a(f"v_and_b32 v{w+3}, 0xffff0000, v{w+3}")
    a("s_waitcnt lgkmcnt(0)")
    for x in fr[8:]: a(x)
    a("s_waitcnt lgkmcnt(4)")
    a(f"v_add_u32 v{vTr}, m0, v{vTrL}")
    a(f"s_mov_b32 s{sI}, 1")
    if o.prio == 1: a(f"s_setprio {P-1}")
    if o.prio in (2, 3):
        a(f"s_cmp_lt_u32 s{sWv}, 4")
        a("s_cbranch_scc1 K2_PR0")
        a("s_setprio 1")
        a.label("K2_PR0")
    a(f"s_cmp_eq_u32 s{sPos}, s{sLim}")
    a("s_cbranch_scc1 K2_DONE")
    a(f"s_sub_u32 s{sLim}, s{sLim}, {8*(D-1)}")
    a("s_branch K2_L0")
    for _ in range(o.pad): a("s_nop 0")

    def mains(j, T):
        if "nomain" in o.abl: return
        for tt in range(4):
            c_ = vr(vAcc + 16 * j + 4 * tt, 4)
            a(f"v_mfma_f32_16x16x32_bf16 {c_}, {vr(T,4)}, {vr(vX+4*tt,4)}, {c_}")
    for j in range(5):
        if o.align: a(f".p2align {o.align}")
        a.label(f"K2_M{j}")
        mains(j, vT)
        a.label(f"K2_L{j}")
        def trreads():
            if "notr" in o.abl: return
            for tt in range(4):
                off = (tt >> 1) * 256 + (tt & 1) * 32
                a(f"ds_read_b64_tr_b16 {vr(vX+4*tt,2)}, v{vTr} offset:{off}")
                a(f"ds_read_b64_tr_b16 {vr(vX+4*tt+2,2)}, v{vTr} offset:{off+512}")
        def amfma():
            if "not" in o.abl: return
            a(f"v_mfma_f32_16x16x16_bf16 {vr(vD,4)}, {vr(vSh,2)}, {vr(vCg,2)}, 0")
            a(f"v_mfma_f32_16x16x16_bf16 {vr(vD+4,4)}, {vr(vSh+2,2)}, {vr(vCg,2)}, 0")
        def muls():
            if "not" in o.abl: return
            if o.pk:
                for i in range(4):
                    a(f"v_pk_mul_f32 {vr(vD+2*i,2)}, {vr(vD+2*i,2)}, {vr(vEa if i < 2 else vEb,2)} op_sel:[0,0] op_sel_hi:[1,0]")
            else:
                for i in range(8):
                    a(f"v_mul_f32 v{vD+i}, v{vD+i}, v{vEa if i < 4 else vEb}")
        def cvts():
            if "not" in o.abl: return
            for i in range(4):
                a(f"v_cvt_pk_bf16_f32 v{vT+i}, v{vD+2*i}, v{vD+2*i+1}")
        def ring():
            if D == 2:
                a(f"s_xor_b32 m0, m0, s{sRE}")
            else:
                a(f"s_add_u32 m0, m0, {SLOT}")
                a(f"s_cmp_eq_u32 m0, s{sRE}")
                a(f"s_cselect_b32 m0, s{sRB}, m0")
        if o.sched == 0:
            a(f"s_waitcnt vmcnt({4*(D-1)})")
            trreads()
            a(f"s_add_u32 s{sPos}, s{sPos}, 8")
            a("s_waitcnt lgkmcnt(8)" if "notr" not in o.abl else "s_waitcnt lgkmcnt(0)")
            amfma()
            for i in range(4):
                a(f"v_add_u32 v{vDa+i}, v{vWn+i}, v{vOff}")
            a(f"ds_read_b128 {vr(vWn,4)}, v{vPW}")
            a(f"v_add_u32 v{vPS}, v{vPS}, v{vStep}")
            a(f"v_add_u32 v{vPW}, 32, v{vPW}")
            a(f"v_add_u32 v{vPE}, v{vPE}, v{v128}")
            a(f"s_cmp_lt_i32 s{sPos}, s{sLim}")
            muls()
            lds_next()
            a("s_cselect_b64 exec, -1, 1")
            a("s_waitcnt lgkmcnt(4)")
            dma(vDa)
            a("s_mov_b64 exec, -1")
            ring()
            cvts()
            a(f"v_add_u32 v{vTr}, m0, v{vTrL}")
        elif o.sched == 1:
            a("s_waitcnt lgkmcnt(0)")
            amfma()
            for i in range(4):
                a(f"v_add_u32 v{vDa+i}, v{vWn+i}, v{vOff}")
            a(f"ds_read_b128 {vr(vWn,4)}, v{vPW}")
            a(f"v_add_u32 v{vPS}, v{vPS}, v{vStep}")
            a(f"v_add_u32 v{vPW}, 32, v{vPW}")
            a(f"v_add_u32 v{vPE}, v{vPE}, v{v128}")
            a(f"s_add_u32 s{sPos}, s{sPos}, 8")
            a(f"s_cmp_lt_i32 s{sPos}, s{sLim}")
            a(f"s_waitcnt vmcnt({4*(D-1)})")
            trreads()
            muls()
            lds_next()
            cvts()
            a("s_cselect_b64 exec, -1, 1")
            a("s_waitcnt lgkmcnt(3)")
            dma(vDa)
            a("s_mov_b64 exec, -1")
            ring()
            a(f"v_add_u32 v{vTr}, m0, v{vTrL}")
        else:
            a("s_waitcnt lgkmcnt(0)")
            amfma()
            for i in range(4):
                a(f"v_add_u32 v{vDa+i}, v{vWn+i}, v{vOff}")
            a(f"ds_read_b128 {vr(vWn,4)}, v{vPW}")
            a(f"v_add_u32 v{vPS}, v{vPS}, v{vStep}")
            a(f"v_add_u32 v{vPW}, 32, v{vPW}")
            a(f"v_add_u32 v{vPE}, v{vPE}, v{v128}")
            a(f"s_add_u32 s{sPos}, s{sPos}, 8")
            a(f"s_cmp_lt_i32 s{sPos}, s{sLim}")
            muls()
            lds_next()
            cvts()
            a(f"s_waitcnt vmcnt({4*(D-1)})")
            trreads()
            a("s_cselect_b64 exec, -1, 1")
            a("s_waitcnt lgkmcnt(0)")
            dma(vDa)
            a("s_mov_b64 exec, -1")
            ring()
            a(f"v_add_u32 v{vTr}, m0, v{vTrL}")
        a(f"s_cmp_gt_u32 s{sEnd}, s{sPos}")
        a(f"s_cbranch_scc1 K2_M{j}")
        a.label(f"K2_B{j}")
        a(f"s_sub_u32 s3, s{sPos}, s{sEnd}")
        a(f"s_add_u32 s{sI}, s{sI}, {4 if j == 4 else 1}")
        a(f"v_cmp_lt_u32 {sr(sMA,2)}, s3, v{vRA}")
        a(f"v_cmp_lt_u32 {sr(sMB,2)}, s3, v{vRB}")
        a(f"v_readlane_b32 s{sEnd}, v{vEnd}, s{sI}")
        for i in range(4):
            a(f"v_cndmask_b32 v{vTm+i}, 0, v{vT+i}, {sr(sMA if i < 2 else sMB,2)}")
        for i in range(4):
            a(f"v_xor_b32 v{vT+i}, v{vT+i}, v{vTm+i}")
        mains(j, vTm)
        if j == 4:
            a(f"s_cmp_gt_u32 s{sI}, {8*P}")
            a("s_cbranch_scc1 K2_DONE")
            if o.prio == 1:
                for ph in range(1, P):
                    a(f"s_cmp_lg_u32 s{sI}, {8*ph+1}")
                    a(f"s_cbranch_scc1 K2_PR{ph}")
                    a(f"s_setprio {P-1-ph}")
                    a.label(f"K2_PR{ph}")
            if o.prio == 3:
                a(f"s_cmp_lg_u32 s{sI}, {8*(P//2)+1}")
                a(f"s_cbranch_scc1 K2_PR1")
                a(f"s_setprio 0")
                a.label(f"K2_PR1")
        a(f"s_cmp_gt_u32 s{sEnd}, s{sPos}")
        a(f"s_cbranch_scc0 K2_B{(j+1)%5}")
        if j == 4 or o.align: a(f"s_branch K2_M{(j+1)%5}")

    a.label("K2_GOSLOW")
    a(f"s_max_u32 s{sMaxc}, s{sT0}, 32")
    a(f"s_mov_b32 s{sSlow}, 1")
    a(f"s_mov_b32 s{sHalf}, 1")
    for i in range(80):
        a(f"v_mov_b32 v{vAcc+i}, 0")
    a("s_waitcnt vmcnt(0) lgkmcnt(0)")
    a("s_barrier")
    a("s_branch K2_BATCH")

    a.label("K2_SLOWNEXT")
    a("s_waitcnt vmcnt(0) lgkmcnt(0)")
    a("s_barrier")
    a(f"s_add_u32 s{sHalf}, s{sHalf}, 1")
    a(f"s_cmp_le_u32 s{sHalf}, 2")
    a("s_cbranch_scc1 K2_BATCH")
    a(f"s_mov_b32 s{sHalf}, 1")
    a(f"s_add_u32 s{sWin}, s{sWin}, 1")
    a(f"s_lshl_b32 s{sT0}, s{sWin}, 4")
    a(f"s_cmp_lt_u32 s{sT0}, s{sMaxc}")
    a("s_cbranch_scc1 K2_BATCH")
    a("s_branch K2_EPI")

    a.label("K2_DONE")
    st.clk(76)
    st("loop")
    a(f"s_cmp_lg_u32 s{sSlow}, 0")
    a("s_cbranch_scc1 K2_SLOWNEXT")
    a.label("K2_EPI")
    e = 44; eP = 48; eB = 58; eD = 2
    a(f"v_and_b32 v{e+1}, 15, v{vLane}")
    a(f"v_lshrrev_b32 v{e+2}, 4, v{vLane}")
    a(f"v_lshl_add_u32 v{e}, v{vLane}, 3, s{sRB}")
    a(f"v_lshlrev_b32 v{e+3}, 7, v{e+1}")
    a(f"v_lshl_add_u32 v{e+3}, v{e+2}, 4, v{e+3}")
    a(f"v_add_u32 v{e+3}, s{sRB}, v{e+3}")
    def red(j):
        for tt in range(4):
            ac = vAcc + 16 * j + 4 * tt
            a(f"v_pk_mul_f32 {vr(ac,2)}, {vr(ac,2)}, {vr(vWr+4*tt,2)}")
        for tt in range(4):
            ac = vAcc + 16 * j + 4 * tt
            a(f"v_pk_fma_f32 {vr(ac,2)}, {vr(ac+2,2)}, {vr(vWr+4*tt+2,2)}, {vr(ac,2)}")
        for tt in range(4):
            ac = vAcc + 16 * j + 4 * tt
            a(f"v_add_f32 v{ac}, v{ac}, v{ac+1}")
        ac = vAcc + 16 * j
        a(f"v_cvt_pk_bf16_f32 v{eP+2*j}, v{ac}, v{ac+4}")
        a(f"v_cvt_pk_bf16_f32 v{eP+2*j+1}, v{ac+8}, v{ac+12}")
        if j == 0: a("s_waitcnt vmcnt(0) lgkmcnt(0)")
        a(f"ds_write_b64 v{e}, {vr(eP+2*j,2)} offset:{512*j}")
    def frag(hh):
        for s2_ in range(2):
            a(f"ds_read_b128 {vr(eB+8*hh+4*s2_,4)}, v{e+3} offset:{2048*hh + 64*s2_}")
    for j in range(4): red(j)
    frag(0)
    red(4)
    frag(1)
    a(f"v_lshrrev_b32 v{e}, 2, v{e+1}")
    a(f"s_add_u32 s3, s{sN0}, s{sWv}")
    a(f"v_lshl_add_u32 v{e}, v{e}, 3, s3         ; node")
    a(f"v_and_b32 v{e+1}, 3, v{e+1}")
    a(f"v_lshlrev_b32 v{e+1}, 7, v{e+1}")
    a(f"v_lshl_add_u32 v{e+1}, v{e+2}, 4, v{e+1}")
    a(f"v_lshl_add_u32 v{e+1}, v{e}, 9, v{e+1}")
    a(f"v_add_u32 v{e+2}, {32*512}, v{e+1}")
    a(f"s_add_u32 s3, s3, 32")
    a(f"s_cmp_lt_u32 s3, s{sN1}")
    a(f"s_cselect_b32 s{sT0}, 0x000f000f, 0")
    a(f"s_mov_b32 s{sT1}, s{sT0}")
    stm = FL[o.k2st]
    for hh in range(2):
        a(f"s_waitcnt lgkmcnt({3 - 3*hh})")
        for s2_ in range(2):
            for tp in range(4):
                d_ = vr(eD + 16 * hh + 4 * tp, 4)
                c_ = "0" if s2_ == 0 else d_
                a(f"v_mfma_f32_16x16x32_bf16 {d_}, {vr(vWo+(tp*2+s2_)*4,4)}, {vr(eB+8*hh+4*s2_,4)}, {c_}")
    for hh in range(2):
        for i in range(8):
            a(f"v_cvt_pk_bf16_f32 v{74+8*hh+i}, v{eD+16*hh+2*i}, v{eD+16*hh+2*i+1}")
        if hh == 1:
            a(f"s_mov_b64 exec, {sr(sT0,2)}")
            a("s_cbranch_execz K2_FIN")
        a(f"global_store_dwordx4 v{e+1+hh}, {vr(74+8*hh,4)}, {sr(sOUT,2)}{stm}")
        a(f"global_store_dwordx4 v{e+1+hh}, {vr(78+8*hh,4)}, {sr(sOUT,2)} offset:64{stm}")
    a.label("K2_FIN")
    st("epi")
    if o.ts:
        a("s_waitcnt vmcnt(0)")
    st("end")
    st.dump(sWS, 2)
    if ENC[0]:
        a(f"s_cmp_eq_u32 s2, {ENC[1]}")
        a("s_cbranch_scc0 K2_END")
        a(f"s_cmp_eq_u32 s{sWv}, 0")
        a("s_cbranch_scc0 K2_END")
        a(f"s_add_u32 s56, s{sWS}, {TS_OFF}")
        a(f"s_addc_u32 s57, s{sWS+1}, 0")
        a("s_load_dwordx2 s[58:59], s[56:57], 0")
        a("s_waitcnt lgkmcnt(0)")
        if ENC[0].startswith("2"): a("s_mov_b32 s59, s54")
        a("s_sub_u32 s59, s59, s58")
        a("s_min_u32 s59, s59, 10000")
        a("s_add_u32 s59, s59, 6000")
        a.label("K2_SPIN")
        a("s_memrealtime s[60:61]")
        a("s_waitcnt lgkmcnt(0)")
        a("s_sub_u32 s60, s60, s58")
        a("s_cmp_lt_u32 s60, s59")
        a("s_cbranch_scc1 K2_SPIN")
    a.label("K2_END")
    a("s_endpgm")
    return dict(lds=LDS, vgpr=NV, threads=NT, cap=CAP)

def kd(name, vgpr):
    v = (vgpr + 7) // 8 * 8
    return f""".amdhsa_kernel {name}
  .amdhsa_next_free_vgpr {v}
  .amdhsa_next_free_sgpr 102
  .amdhsa_accum_offset {v}
  .amdhsa_group_segment_fixed_size 0
  .amdhsa_kernarg_size 88
  .amdhsa_user_sgpr_count 2
  .amdhsa_user_sgpr_kernarg_segment_ptr 1
  .amdhsa_system_sgpr_workgroup_id_x 1
  .amdhsa_float_denorm_mode_32 3
.end_amdhsa_kernel
"""

def main():
    p = argparse.ArgumentParser()
    p.add_argument("-o", default="out.s")
    p.add_argument("--D", type=int, default=2)
    p.add_argument("--D0", type=int, default=-1)
    p.add_argument("--P", type=int, default=4)
    p.add_argument("--ts", type=int, default=0)
    p.add_argument("--k1ld", default="nt")
    p.add_argument("--k1st", default="plain")
    p.add_argument("--k2st", default="plain")
    p.add_argument("--k1ord", default="d/sh/e")
    p.add_argument("--psched", default="3,1,1,2,1")
    p.add_argument("--ipf", type=int, default=0)
    p.add_argument("--mall", type=int, default=0)
    p.add_argument("--pf", type=int, default=0)
    p.add_argument("--touchfirst", type=int, default=0)
    p.add_argument("--cpf", type=int, default=1)
    p.add_argument("--prio", type=int, default=0)
    p.add_argument("--align", type=int, default=0)
    p.add_argument("--capmax", type=int, default=3200)
    p.add_argument("--abl", default="")
    p.add_argument("--pk", type=int, default=0)
    p.add_argument("--sched", type=int, default=1)
    p.add_argument("--pad", type=int, default=0)
    p.add_argument("--enc", default="")
    p.add_argument("--encwg", type=int, default=0)
    o = p.parse_args()
    o.abl = o.abl.split(",")
    ENC[0] = o.enc or None; ENC[1] = o.encwg
    a = Asm()
    i1 = gen_k1(a, o)
    i2 = gen_k2(a, o)
    body = a.text()
    n = check(body)
    out = HDR
    out += f"; @launch kernel=bucket_kernel grid=({NCH},1,1) block=({i1['threads']},1,1) lds={i1['lds']}\n"
    out += f"; @launch kernel=gather_kernel grid=({NCH},1,1) block=({i2['threads']},1,1) lds={i2['lds']}\n"
    out += '.amdgcn_target "amdgcn-amd-amdhsa--gfx950"\n.text\n'
    out += ".globl bucket_kernel\n.type bucket_kernel,@function\n.globl gather_kernel\n.type gather_kernel,@function\n"
    out += body
    out += '.section .rodata,"a"\n.p2align 6\n' + kd("bucket_kernel", i1["vgpr"]) + ".p2align 6\n" + kd("gather_kernel", i2["vgpr"])
    open(o.o, "w").write(out)
    print(f"wrote {o.o}: k2 {i2} hazards {n}", file=sys.stderr)

if __name__ == "__main__":
    main()
```

```python
import sys, argparse
from asmlib import Asm, vr, sr, check

HDR = """; Kernarg layout for this problem (88 bytes, ptrs only, base s[0:1]):
;   offset  16: d_in[2] dst  shape=(640000,) dtype=int32
"""

NCH = 256
CS = 2560
IDX_OFF = 0x40000
PAY_OFF = 0x300000
TS_OFF = 0x1000000
MAGIC = 429497
XBYTES = 5120000
MAIN = "gather_scatter__tensor_product_equiv_mace__graph_kernel"
FL = {"plain": "", "nt": " nt", "sc1": " sc1", "sc0sc1": " sc0 sc1", "ntsc1": " sc1 nt", "sc0": " sc0"}

def dpp_scan(a, v):
    for sh in (1, 2, 4, 8):
        a("s_nop 1")
        a(f"v_add_u32_dpp {v}, {v}, {v} row_shr:{sh} row_mask:0xf bank_mask:0xf bound_ctrl:0")
    a("s_nop 1")
    a(f"v_add_u32_dpp {v}, {v}, {v} row_bcast:15 row_mask:0xa bank_mask:0xf")
    a("s_nop 1")
    a(f"v_add_u32_dpp {v}, {v}, {v} row_bcast:31 row_mask:0xc bank_mask:0xf")

ENC = [None, 0]
class Stamps:
    def __init__(self, a, on, regs, kidx):
        self.a = a; self.on = on; self.regs = regs; self.n = 0; self.kidx = kidx; self.clks = []
    def __call__(self, name=""):
        if ENC[0]:
            if f"{self.kidx+1}{name}" == ENC[0]:
                self.a(f"s_memrealtime {sr(self.regs[1], 2)}")
                self.a("s_waitcnt lgkmcnt(0)")
            return
        if not self.on: return
        self.a(f"s_memrealtime {sr(self.regs[self.n], 2)}")
        self.a("s_waitcnt lgkmcnt(0)")
        self.n += 1
    def clk(self, reg):
        if not self.on: return
        self.a(f"s_memtime {sr(reg, 2)}")
        self.clks.append(reg)
    def dump(self, sws, vt):
        if not self.on: return
        a = self.a
        a("s_mov_b64 exec, -1")
        a(f"v_lshrrev_b32 {vr(vt)}, 6, v0")
        a(f"s_lshl_b32 s3, s2, 4")
        a(f"s_add_u32 s3, s3, {self.kidx*256*16}")
        a(f"v_add_u32 {vr(vt)}, s3, {vr(vt)}")
        a(f"v_lshlrev_b32 {vr(vt)}, 6, {vr(vt)}")
        a(f"v_add_u32 {vr(vt)}, {TS_OFF}, {vr(vt)}")
        a("s_mov_b64 exec, 1")
        for i in range(self.n):
            a(f"v_mov_b32 {vr(vt+1)}, {sr(self.regs[i])}")
            a(f"global_store_dword {vr(vt)}, {vr(vt+1)}, {sr(sws,2)} offset:{4*i}")
        for i, r in enumerate(self.clks):
            a(f"v_mov_b32 {vr(vt+1)}, {sr(r)}")
            a(f"global_store_dword {vr(vt)}, {vr(vt+1)}, {sr(sws,2)} offset:{4*(14+i)}")

def gen_k1(a, o):
    HIST, BASE, IDXS, PAYS = 0, 1024, 2048, 12288
    st = Stamps(a, o.ts, list(range(60, 90, 2)), 0)
    ldm = FL[o.k1ld]; stm = FL[o.k1st]; tbm = FL["sc1"] if o.fused else ""
    vD, vS, vH, vE, vA, vR, vB = 4, 10, 16, 26, 36, 42, 48
    a(".p2align 8")
    a.label(MAIN if o.fused else "bucket_kernel")
    a(f"s_cmp_ge_u32 s2, {NCH}")
    a("s_cbranch_scc1 K2_END" if o.fused else "s_cbranch_scc1 K1_END")
    if ENC[0]:
        a("s_memrealtime s[60:61]")
        a("s_memrealtime s[62:63]")
    a("s_load_dwordx8 s[8:15], s[0:1], 8       ; src, dst, sh, edge_attr")
    a("s_load_dwordx2 s[16:17], s[0:1], 80     ; ws")
    a("s_load_dwordx2 s[18:19], s[0:1], 0      ; x")
    if o.touch or o.fused:
        a("s_load_dwordx8 s[36:43], s[0:1], 40")
        a("s_load_dwordx2 s[44:45], s[0:1], 72     ; debug")
    if o.cpf:
        a("s_getpc_b64 s[4:5]")
        a.label("K1_PC")
        a("v_lshlrev_b32 v68, 7, v0")
        a("v_cmp_gt_u32 vcc, K2_END-K1_PC, v68")
        a("s_mov_b64 exec, vcc")
        a("s_cbranch_execz K1_NOCPF")
        a("global_load_dword v69, v68, s[4:5]      ; pull the code towards this die")
        a.label("K1_NOCPF")
        a("s_mov_b64 exec, -1")
    a("s_mul_i32 s3, s2, 625")
    a("s_add_u32 s24, s3, 625")
    a("s_lshr_b32 s3, s3, 2")
    a("s_lshr_b32 s24, s24, 2")
    a("s_sub_u32 s24, s24, s3")
    a("s_lshl_b32 s24, s24, 4")
    a("s_sub_u32 s25, s24, 2049")
    a("s_lshl_b32 s3, s3, 6")
    a("s_add_u32 s3, s3, 4096")
    a("v_lshl_add_u32 v1, v0, 3, s3            ; src/dst byte offset of the second pair")
    a("v_min_u32 v2, s25, v0")
    a("s_add_u32 s3, s3, 4096")
    a("v_lshl_add_u32 v2, v2, 2, s3")
    a("v_lshlrev_b32 v54, 2, v0")
    a("v_mov_b32 v55, 0")
    a("ds_write_b32 v54, v55")
    a("v_cmp_ge_u32 s[20:21], s25, v0")
    a("v_lshlrev_b32 v3, 1, v1")
    a("v_lshlrev_b32 v57, 1, v2")
    a("v_add_u32 v56, 0xffffe000, v3")
    a("s_waitcnt lgkmcnt(0)")
    st("start")
    def ld(nm):
        if nm in "ds":
            r, b = (vD, "s[10:11]") if nm == "d" else (vS, "s[8:9]")
            a(f"global_load_dwordx2 {vr(r,2)}, v1, {b} offset:-4096{ldm}")
            a(f"global_load_dwordx2 {vr(r+2,2)}, v1, {b}{ldm}")
            a(f"global_load_dword v{r+4}, v2, {b}{ldm}")
        else:
            r, b = (vH, "s[12:13]") if nm == "h" else (vE, "s[14:15]")
            a(f"global_load_dwordx4 {vr(r,4)}, v56, {b}{ldm}")
            a(f"global_load_dwordx4 {vr(r+4,4)}, v3, {b}{ldm}")
            a(f"global_load_dwordx2 {vr(r+8,2)}, v57, {b}{ldm}")
    g0, g1, g2 = o.k1ord.split("/")
    assert (g0 + g1 + g2) == "dshe"
    for c in g0: ld(c)
    a(f"s_mov_b32 s22, {MAGIC}")
    a("s_movk_i32 s23, 625")
    a("v_mov_b32 v55, 1")
    a("s_barrier")
    for c in g1: ld(c)
    a("v_and_b32 v58, 63, v0")
    a("v_lshlrev_b32 v58, 4, v58")
    a(f"s_waitcnt vmcnt({3*(len(g0)+len(g1)) - 3})")
    st("dst")
    for i in range(5):
        a(f"v_mul_u32_u24 v{vA+i}, s22, v{vD+i}")
    for i in range(5):
        a(f"v_lshrrev_b32 v{vB+i}, 24, v{vA+i}       ; bucket")
    for i in range(5):
        a(f"v_lshlrev_b32 v{vA+i}, 2, v{vB+i}")
        if i == 4: a("s_mov_b64 exec, s[20:21]")
        a(f"ds_add_rtn_u32 v{vR+i}, v{vA+i}, v55 offset:{HIST}")
    a("s_mov_b64 exec, -1")
    for c in g2: ld(c)
    a("s_waitcnt lgkmcnt(0)")
    a("s_barrier")
    a(f"ds_read_b128 v[60:63], v58 offset:{HIST}")
    for i in range(5):
        a(f"v_mad_u32_u24 v{vB+i}, v{vB+i}, s23, 15")
    for i in range(5):
        a(f"v_lshrrev_b32 v{vB+i}, 4, v{vB+i}")
    for i in range(5):
        a(f"v_sub_u32 v{vD+i}, v{vD+i}, v{vB+i}")
    fill = []
    for i in range(5):
        fill += [f"v_and_b32 v{vB+i}, 7, v{vD+i}", f"v_lshrrev_b32 v{vD+i}, 3, v{vD+i}", f"v_lshl_or_b32 v{vD+i}, v{vB+i}, 5, v{vD+i}"]
    for x in fill[12:]: a(x)
    a("s_waitcnt lgkmcnt(0)")
    a("v_add_u32 v66, v60, v61")
    a("v_add_u32 v67, v66, v62")
    a("v_add_u32 v54, v67, v63")
    a("v_mov_b32 v59, v54")
    steps = [f"row_shr:{s} row_mask:0xf bank_mask:0xf bound_ctrl:0" for s in (1, 2, 4, 8)] + \
            ["row_bcast:15 row_mask:0xa bank_mask:0xf", "row_bcast:31 row_mask:0xc bank_mask:0xf"]
    for k, s in enumerate(steps):
        a(fill[2*k]); a(fill[2*k+1])
        a(f"v_add_u32_dpp v59, v59, v59 {s}")
    a("v_sub_u32 v64, v59, v54")
    a("v_add_u32 v65, v64, v60")
    a("v_add_u32 v66, v64, v66")
    a("v_add_u32 v67, v64, v67")
    a(f"ds_write_b128 v58, v[64:67] offset:{BASE}")
    for i in range(5):
        a(f"ds_read_b32 v{vB+i}, v{vA+i} offset:{BASE}")
    a("v_lshrrev_b32 v54, 6, v0")
    a("s_and_b32 s3, s2, 7")
    a("s_lshl_b32 s3, s3, 5")
    a("v_readfirstlane_b32 s26, v54")
    a("s_lshr_b32 s27, s2, 3")
    a("s_add_u32 s3, s3, s27")
    a("s_lshl_b32 s3, s3, 2")
    a("s_cmp_lg_u32 s26, 7")
    a("s_cbranch_scc1 K1_NOTAB")
    a("v_lshl_add_u32 v59, v58, 8, s3")
    for i in range(4):
        a(f"v_lshl_or_b32 v{60+i}, v{60+i}, 16, v{64+i}")
        a(f"global_store_dword v59, v{60+i}, s[16:17] offset:{1024*i}{tbm}")
    a.label("K1_NOTAB")
    if o.touch:
        a("s_cmp_lg_u32 s26, 6")
        a("s_cbranch_scc1 K1_NOTOUCH")
        a("v_lshlrev_b32 v70, 3, v58               ; lane*128")
        a("global_load_dword v69, v70, s[40:41]    ; w_out")
        a("s_mov_b64 exec, 0xf")
        a("global_load_dword v69, v70, s[38:39]    ; w_r")
        a("s_mov_b64 exec, 1")
        a("global_load_dword v69, v70, s[36:37]    ; cg")
        a("s_mov_b64 exec, 0x3ff")
        a("v_lshlrev_b32 v70, 15, v58              ; lane*512KB")
        a("global_load_dword v69, v70, s[18:19]    ; x")
        if o.touch > 1: a("global_load_dword v69, v70, s[42:43]    ; out")
        a("s_mov_b64 exec, -1")
        a.label("K1_NOTOUCH")
    a("s_waitcnt vmcnt(6)")
    if o.P > 1:
        a(f"s_mov_b32 s22, {(o.P << 24) // 10000}")
        for i in range(5):
            a(f"v_mul_u32_u24 v{vA+i}, s22, v{vS+i}")
        for i in range(5):
            a(f"v_lshrrev_b32 v{vA+i}, 24, v{vA+i}")
        for i in range(5):
            a(f"v_lshl_or_b32 v{vD+i}, v{vA+i}, 3, v{vD+i}")
    for i in range(5):
        a(f"v_lshl_or_b32 v{vD+i}, v{vS+i}, 9, v{vD+i}")
    a("s_waitcnt lgkmcnt(0)")
    for i in range(5):
        a(f"v_add_u32 v{vS+i}, v{vB+i}, v{vR+i}")
    for i in range(5):
        a(f"v_lshlrev_b32 v{vA+i}, 2, v{vS+i}")
        if i == 4: a("s_mov_b64 exec, s[20:21]")
        a(f"ds_write_b32 v{vA+i}, v{vD+i} offset:{IDXS}")
    a("s_mov_b64 exec, -1")
    for i in range(5):
        a(f"v_lshlrev_b32 v{vS+i}, 4, v{vS+i}")
    st("pos")
    a("v_lshlrev_b32 v1, 4, v0")
    a(f"s_mul_i32 s3, s2, {CS*4}")
    a(f"s_add_u32 s3, s3, {IDX_OFF}")
    a("v_add_u32 v2, s3, v1")
    a("v_add_u32 v3, 8192, v2")
    a(f"s_mul_i32 s3, s2, {CS*16}")
    a(f"s_add_u32 s3, s3, {PAY_OFF}")
    a(f"v_add_u32 v{vR}, s3, v1")
    for j in range(1, 5):
        a(f"v_add_u32 v{vR+j}, {8192*j}, v{vR}")
    if o.mall:
        a(f"s_mul_i32 s3, s2, {XBYTES//NCH}")
        a(f"v_lshl_add_u32 v56, v0, 7, s3")
        a(f"v_cmp_gt_u32 vcc, {(XBYTES//NCH + 127) >> 7}, v0")
        a("s_mov_b64 s[28:29], vcc")
    if o.pf:
        sl = o.pf // 32
        assert sl <= 65536
        a("s_lshr_b32 s3, s2, 3")
        a(f"s_mul_i32 s3, s3, {sl}")
        a(f"v_lshl_add_u32 v57, v0, 7, s3")
        a(f"v_cmp_gt_u32 vcc, {(sl + 127) >> 7}, v0")
        a("s_mov_b64 s[30:31], vcc")
    a("s_lshr_b32 s25, s24, 2")
    a("s_sub_u32 s25, s25, 512")
    a("v_cmp_gt_u32 s[26:27], s25, v0")
    a("s_waitcnt vmcnt(3)")
    for i in range(5):
        if i == 4: a("s_mov_b64 exec, s[20:21]")
        a(f"ds_write_b64 v{vS+i}, {vr(vH+2*i,2)} offset:{PAYS}")
    a("s_mov_b64 exec, -1")
    for i in range(5):
        if i in (0, 2, 4): a(f"s_waitcnt vmcnt({2 - i//2})")
        if i == 4:
            st("allin")
            a("s_mov_b64 exec, s[20:21]")
        a(f"ds_write_b64 v{vS+i}, {vr(vE+2*i,2)} offset:{PAYS+8}")
    a("s_mov_b64 exec, -1")
    a("s_waitcnt lgkmcnt(0)")
    a("s_barrier")
    st("staged")
    for j in range(5):
        a(f"ds_read_b128 {vr(4+4*j,4)}, v1 offset:{PAYS + 8192*j}")
    a(f"ds_read_b128 v[24:27], v1 offset:{IDXS}")
    a(f"ds_read_b128 v[28:31], v1 offset:{IDXS+8192}")
    def touches():
        if o.mall:
            a("s_mov_b64 exec, s[28:29]")
            a("s_cbranch_execz K1_NOMALL")
            a("global_load_dword v69, v56, s[18:19]")
            a.label("K1_NOMALL")
        if o.pf:
            a("s_mov_b64 exec, s[30:31]")
            a("s_cbranch_execz K1_NOPF")
            a("global_load_dword v69, v57, s[18:19]")
            a.label("K1_NOPF")
        a("s_mov_b64 exec, -1")
    if o.touchfirst: touches()
    for j in range(5):
        a(f"s_waitcnt lgkmcnt({6-j})")
        if j == 4: a("s_mov_b64 exec, s[20:21]")
        a(f"global_store_dwordx4 v{vR+j}, {vr(4+4*j,4)}, s[16:17]{stm}")
    a("s_mov_b64 exec, -1")
    a("s_waitcnt lgkmcnt(1)")
    a(f"global_store_dwordx4 v2, v[24:27], s[16:17]{stm}")
    a("s_mov_b64 exec, s[26:27]")
    a("s_waitcnt lgkmcnt(0)")
    a(f"global_store_dwordx4 v3, v[28:31], s[16:17]{stm}")
    a("s_mov_b64 exec, -1")
    if not o.touchfirst and not o.fused: touches()
    st("issued")
    if o.ts or o.fused or ENC[0] == "1done":
        a("s_waitcnt vmcnt(0)")
        st("done")
    st.dump(16, 30)
    if ENC[0]:
        a(f"v_cmp_eq_u32 vcc, 0, v0")
        a(f"s_cmp_eq_u32 s2, {ENC[1]}")
        a("s_cselect_b64 exec, vcc, 0")
        a("s_cbranch_execz K1_NOENC")
        a("v_mov_b32 v30, s60"); a("v_mov_b32 v31, s62"); a(f"v_mov_b32 v32, {TS_OFF}")
        a("global_store_dwordx2 v32, v[30:31], s[16:17]")
        a.label("K1_NOENC")
    if o.fused:
        a("s_mov_b64 exec, -1")
        a("s_barrier")
        a("v_cmp_eq_u32 vcc, 0, v0")
        a("s_mov_b64 exec, vcc")
        a("s_cbranch_execz K1_WAITED")
        a("v_mov_b32 v4, 0")
        a("v_mov_b32 v5, 1")
        a("global_atomic_add v4, v5, s[44:45] sc1")
        a.label("K1_POLL")
        a("global_load_dword v6, v4, s[44:45] sc1")
        a("s_waitcnt vmcnt(0)")
        a("v_readfirstlane_b32 s3, v6")
        a(f"s_cmp_ge_u32 s3, {NCH}")
        a("s_cbranch_scc1 K1_WAITED")
        a("s_sleep 4")
        a("s_branch K1_POLL")
        a.label("K1_WAITED")
        a("s_mov_b64 exec, -1")
        if not o.touchfirst: touches()
        a("s_barrier")
        return None
    a.label("K1_END")
    a("s_endpgm")
    return dict(lds=12288 + 40960, vgpr=72, threads=512)

def gen_k2(a, o):
    NW = 8; NT = 512; NR = 8; D = o.D; P = o.P
    hm = " sc1" if o.fused else ""
    PO = [0, 1056, 2080, 3136]
    SLOT = 4160; WR = D * SLOT; RING = NW * WR
    HIST = 0; MISC = 1024; BASE = 2048
    PS = 1056
    WOL = RING; ZERO = WOL + 8 * PS; CONST = ZERO + 128; WOFF = CONST + 512
    CAP = min(((163840 - WOFF) // 20) // 8 * 8, o.capmax)
    POFF = WOFF + CAP * 4
    LDS = POFF + CAP * 16
    assert LDS <= 163840 and POFF % 16 == 0 and WOFF % 16 == 0
    TAILW = 8 * (D + 2)
    assert 4 * NT + 56 + TAILW <= CAP
    DUMMY = 0x3fff << 9
    st = Stamps(a, o.ts, list(range(52, 70, 2)) + [78, 80, 82, 84], 1)
    sX, sCG, sWR, sWO, sOUT, sWS = 4, 8, 10, 12, 14, 16
    sB, sN0, sN1, sWv = 18, 19, 20, 21
    sIDX, sPAY = 22, 24
    sSlow, sWin, sHalf, sMaxc = 26, 27, 28, 29
    sPos, sEnd, sI, sLim, sT0, sT1, sRB, sRE = 30, 31, 32, 33, 34, 35, 36, 37
    sAny = 38
    sXS = 40
    sWS4 = 44
    sSO = 48
    sTot = 51
    sWOFF, sPOFF = 6, 7
    sRM = 70
    sMA, sMB = 70, 72
    def mk0(r): return sr(sRM + 2 * r, 2)
    def mk1(r): return sr(sRM + 16 + 2 * r, 2)
    vEnt, vRb, vPo, vW0, vW1, vRk0, vRk1, vP0, vP1, t = 2, 10, 18, 26, 34, 42, 50, 58, 90, 122
    vKa = 136
    vCg = 152; vWn = 154; vEnd = 158
    vPS, vPE, vPW, vTr = 159, 160, 161, 162
    vLane, vOff, vTrL, vStep, vLW, vLS, vLE, vLive, vRA, vRB, v128 = range(164, 175)
    vAcc = 176
    vX, vD, vT, vTm, vSh, vEa, vDa = 2, 18, 26, 30, 34, 38, 40
    vEb = 132
    vWo = 90; vWr = 136
    NV = 256

    def tab_loads():
        a(f"global_load_dwordx4 {vr(vEnt,4)}, v{t+6}, {sr(sWS,2)}{hm}")
        a(f"global_load_dwordx4 {vr(vEnt+4,4)}, v{t+6}, {sr(sWS,2)} offset:16{hm}")
    def tab_addr():
        a(f"v_lshrrev_b32 v1, 4, v0")
        a(f"s_lshl_b32 s3, s{sB}, 10")
        a(f"v_lshl_add_u32 v{t+6}, v1, 5, s3")
    def clear_hist():
        a(f"v_mov_b32 v{t}, 0")
        a(f"v_lshlrev_b32 v{t+5}, 2, v0")
        a(f"ds_write_b32 v{t+5}, v{t}")

    if not o.fused:
        a(".p2align 8")
        a.label("gather_kernel")
        a(f"s_cmp_ge_u32 s2, {NCH}")
        a("s_cbranch_scc1 K2_END")
    if ENC[0] == "2entry": a("s_memrealtime s[54:55]")
    a(f"s_load_dwordx2 {sr(sWS,2)}, s[0:1], 80")
    a(f"s_load_dwordx8 s[8:15], s[0:1], 40")
    a(f"s_load_dwordx2 {sr(sX,2)}, s[0:1], 0")
    a(f"s_and_b32 s{sB}, s2, 7")
    a(f"s_lshl_b32 s{sB}, s{sB}, 5")
    a(f"s_lshr_b32 s3, s2, 3")
    a(f"s_add_u32 s{sB}, s{sB}, s3              ; bucket")
    a(f"v_lshrrev_b32 v1, 6, v0")
    a(f"v_and_b32 v{vLane}, 63, v0")
    a(f"v_readfirstlane_b32 s{sWv}, v1")
    tab_addr()
    if o.ipf:
        a(f"s_and_b32 s3, s2, 0xf8")
        a(f"s_add_u32 s3, s3, s{sWv}")
        a(f"s_mul_i32 s3, s3, {CS*4}")
        a(f"s_and_b32 s{sT0}, s2, 7")
        a(f"s_mul_i32 s{sT0}, s{sT0}, 1250")
        a(f"s_add_u32 s3, s3, s{sT0}")
        a(f"s_add_u32 s3, s3, {IDX_OFF - 64}")
        a(f"v_lshl_add_u32 v{t+7}, v{vLane}, 7, s3")
    a(f"s_mul_i32 s{sRB}, s{sWv}, {WR}")
    a(f"s_mov_b32 s{sWS4+2}, 8192")
    a(f"s_mov_b32 s{sWS4+3}, 0x20000")
    a("s_waitcnt lgkmcnt(0)")
    st("start")
    tab_loads()
    nx = 0
    if o.ipf:
        a(f"s_mov_b64 exec, {hex((1 << o.ipf) - 1)}")
        a(f"global_load_dword v175, v{t+7}, {sr(sWS,2)}")
        a("s_mov_b64 exec, -1")
        nx += 1
    a(f"s_mov_b32 s{sWS4}, s{sWO}")
    a(f"s_mov_b32 s{sWS4+1}, s{sWO+1}")
    clear_hist()
    a(f"v_and_b32 v{t+5}, 31, v0")
    a(f"v_lshlrev_b32 v{t+5}, 2, v{t+5}")
    a(f"v_add_u32 v{t+5}, {ZERO}, v{t+5}")
    a(f"ds_write_b32 v{t+5}, v{t}")
    a(f"s_mov_b32 s{sSlow}, 0")
    a(f"s_mov_b32 s{sWin}, 0")
    a(f"s_mov_b32 s{sHalf}, 0")
    a(f"s_add_u32 s{sIDX}, s{sWS}, {IDX_OFF}")
    a(f"s_addc_u32 s{sIDX+1}, s{sWS+1}, 0")
    a(f"s_add_u32 s{sPAY}, s{sWS}, {PAY_OFF}")
    a(f"s_addc_u32 s{sPAY+1}, s{sWS+1}, 0")
    a(f"s_mov_b32 s{sWOFF}, {WOFF}")
    a(f"s_mov_b32 s{sPOFF}, {POFF}")
    a("s_branch K2_BATCH0")

    a.label("K2_BATCH")
    tab_addr()
    tab_loads()
    clear_hist()
    a("s_waitcnt vmcnt(0)")

    a.label("K2_BATCH0")
    thL, thH, th1, l16 = t, t + 1, t + 2, t + 3
    a(f"v_and_b32 v{l16}, 15, v0")
    a(f"s_lshl_b32 s{sT0}, s{sWin}, 4           ; 16*window")
    a(f"s_cmp_eq_u32 s{sHalf}, 2")
    a(f"s_cselect_b32 s{sT1}, 0x10000, s{sT0}   ; low rounds disabled when half==2")
    a(f"v_add_u32 v{thL}, s{sT1}, v{l16}")
    a(f"s_cmp_eq_u32 s{sHalf}, 1")
    a(f"s_cselect_b32 s{sT1}, 0x10000, s{sT0}   ; high rounds disabled when half==1")
    a(f"v_add_u32 v{thH}, s{sT1}, v{l16}")
    a(f"s_cmp_eq_u32 s{sSlow}, 0")
    a(f"s_cselect_b32 s{sT1}, 16, 0x10000")
    a(f"v_add_u32 v{th1}, s{sT1}, v{l16}")
    a(f"v_lshrrev_b32 v1, 4, v{vLane}")
    a(f"v_lshl_add_u32 v1, v1, 6, s{sWv}")
    a(f"v_mul_u32_u24 v{vRb}, {CS}, v1")
    a(f"v_add3_u32 v{vRb}, v{vRb}, v{l16}, s{sT0}")
    for r in range(1, NR):
        a(f"v_add_u32 v{vRb+r}, {8*CS*r}, v{vRb}")
    a(f"s_waitcnt vmcnt({nx})")
    st("table")
    for r in range(NR):
        a(f"v_add_u32_sdwa v{vRb+r}, v{vEnt+r}, v{vRb+r} dst_sel:DWORD dst_unused:UNUSED_PAD src0_sel:WORD_0 src1_sel:DWORD")
        a(f"v_cmp_gt_u32_sdwa {mk0(r)}, v{vEnt+r}, v{thL if r < NR//2 else thH} src0_sel:WORD_1 src1_sel:DWORD")
        a(f"v_lshlrev_b32 v{vPo+r}, 2, v{vRb+r}")
        a(f"s_mov_b64 exec, {mk0(r)}")
        a(f"global_load_dword v{vW0+r}, v{vPo+r}, {sr(sIDX,2)}{hm}")
        a("s_mov_b64 exec, -1")
    for r in range(NR):
        a(f"v_cmp_gt_u32_sdwa {mk1(r)}, v{vEnt+r}, v{th1} src0_sel:WORD_1 src1_sel:DWORD")
        a(f"v_lshlrev_b32 v{vRb+r}, 4, v{vRb+r}")
    a(f"s_or_b64 {sr(sAny,2)}, {mk1(0)}, {mk1(1)}")
    for r in range(2, NR):
        a(f"s_or_b64 {sr(sAny,2)}, {sr(sAny,2)}, {mk1(r)}")
    a("s_cbranch_scc0 K2_NOW1A")
    for r in range(NR):
        a(f"s_mov_b64 exec, {mk1(r)}")
        a(f"s_cbranch_execz K2_W1A_{r}")
        a(f"global_load_dword v{vW1+r}, v{vPo+r}, {sr(sIDX,2)} offset:64{hm}")
        a(f"global_load_dwordx4 {vr(vP1+4*r,4)}, v{vRb+r}, {sr(sPAY,2)} offset:256{hm}")
        a.label(f"K2_W1A_{r}")
    a.label("K2_NOW1A")
    a("s_waitcnt lgkmcnt(0)")
    a("s_barrier")
    sched = [int(x) for x in o.psched.split(",")]
    assert sum(sched) == NR and len(sched) == 5
    pr = [0]
    def pay(n):
        for _ in range(n):
            r = pr[0]; pr[0] += 1
            a(f"s_mov_b64 exec, {mk0(r)}")
            a(f"global_load_dwordx4 {vr(vP0+4*r,4)}, v{vRb+r}, {sr(sPAY,2)}{hm}")
        if n: a("s_mov_b64 exec, -1")
    a("s_mov_b64 exec, -1")
    pay(sched[0])
    st("issued")
    one, two = t + 4, t + 5
    a(f"v_mov_b32 v{t+7}, {MISC}")
    a(f"s_cmp_eq_u64 {sr(sAny,2)}, 0")
    a("s_cbranch_scc1 K2_NOMAX")
    a(f"v_max3_u32 v{t+8}, v{vEnt}, v{vEnt+1}, v{vEnt+2}")
    a(f"v_max3_u32 v{t+8}, v{t+8}, v{vEnt+3}, v{vEnt+4}")
    a(f"v_max3_u32 v{t+8}, v{t+8}, v{vEnt+5}, v{vEnt+6}")
    a(f"v_max_u32 v{t+8}, v{t+8}, v{vEnt+7}")
    a(f"v_lshrrev_b32 v{t+8}, 16, v{t+8}")
    a(f"v_cmp_lt_u32 vcc, 32, v{t+8}")
    a("s_mov_b64 exec, vcc")
    a(f"ds_max_u32 v{t+7}, v{t+8}")
    a("s_mov_b64 exec, -1")
    a.label("K2_NOMAX")
    a(f"s_cmp_lg_u32 s{sSlow}, 0")
    a("s_cbranch_scc1 K2_NOSETUP")
    a(f"s_mul_i32 s{sN0}, s{sB}, 625")
    a(f"s_add_u32 s{sN1}, s{sN0}, 640")
    a(f"s_add_u32 s{sN0}, s{sN0}, 15")
    a(f"s_lshr_b32 s{sN0}, s{sN0}, 4")
    a(f"s_lshr_b32 s{sN1}, s{sN1}, 4")
    a(f"s_sub_u32 s{sXS}, s{sX}, {PO[3]}")
    a(f"s_subb_u32 s{sXS+1}, s{sX+1}, 0")
    a(f"s_mov_b32 s{sXS+2}, {XBYTES + PO[3]}")
    a(f"s_mov_b32 s{sXS+3}, 0x20000")
    for i in range(3): a(f"s_movk_i32 s{sSO+i}, {PO[3]-PO[i]}")
    if D == 2:
        a(f"s_add_u32 s{sRE}, s{sRB}, {SLOT}")
        a(f"s_xor_b32 s{sRE}, s{sRE}, s{sRB}")
    else:
        a(f"s_add_u32 s{sRE}, s{sRB}, {WR}")
    L = vLane; u, f, x_ = t + 8, t + 9, t + 10
    a(f"v_bfe_u32 v{f}, v{L}, 2, 2              ; (L>>2)&3")
    a(f"v_and_b32 v{u}, 3, v{L}                 ; L&3")
    a(f"v_lshrrev_b32 v{x_}, 4, v{L}            ; g")
    a(f"v_lshlrev_b32 v{vOff}, 7, v{f}")
    a(f"v_lshl_add_u32 v{vOff}, v{u}, 4, v{vOff}")
    a(f"v_and_b32 v{vTrL}, 1, v{x_}")
    a(f"v_lshl_add_u32 v{vOff}, v{vTrL}, 6, v{vOff}")
    a(f"v_add_u32 v{vTrL}, 1, v{x_}")
    a(f"v_lshrrev_b32 v{vTrL}, 1, v{vTrL}")
    a(f"v_lshlrev_b32 v{vTrL}, 5, v{vTrL}")
    a(f"v_lshl_add_u32 v{vTrL}, v{x_}, 10, v{vTrL}")
    a(f"v_lshl_add_u32 v{vTrL}, v{f}, 6, v{vTrL}")
    a(f"v_lshl_add_u32 v{vTrL}, v{u}, 3, v{vTrL}")
    a(f"v_lshrrev_b32 v{vLW}, 5, v{L}")
    a(f"v_lshl_add_u32 v{vLW}, v{vLW}, 4, s{sWOFF}")
    a(f"v_lshl_add_u32 v{vLE}, v{x_}, 4, s{sPOFF}")
    a(f"v_lshl_add_u32 v{vLE}, v{u}, 1, v{vLE}")
    a(f"v_add_u32 v{vLE}, 8, v{vLE}")
    a(f"v_cmp_eq_u32 {sr(sT0,2)}, v{u}, v{x_}")
    a(f"v_lshl_add_u32 v{f}, v{f}, 4, s{sPOFF}")
    a(f"v_mov_b32 v{vLS}, {ZERO}")
    a(f"v_cndmask_b32 v{vLS}, v{vLS}, v{f}, {sr(sT0,2)}")
    a(f"v_cndmask_b32 v{vLive}, 0, 16, {sr(sT0,2)}")
    a(f"v_lshlrev_b32 v{vStep}, 3, v{vLive}")
    a(f"v_sub_u32 v{vRA}, 8, v{x_}")
    a(f"v_sub_u32 v{vRB}, 4, v{x_}")
    a(f"v_mov_b32 v{v128}, 128")
    a.label("K2_NOSETUP")
    a(f"v_mov_b32 v{one}, 1")
    a(f"v_mov_b32 v{two}, 2")
    a(f"v_lshlrev_b32 v{t+6}, 4, v{vLane}")
    m1, m2 = t + 12, t + 13
    a(f"v_and_b32 v{m2}, 7, v{vLane}")
    a(f"v_cmp_lt_u32 vcc, 0, v{m2}")
    a(f"v_cmp_lt_u32 {sr(sT0,2)}, 1, v{m2}")
    a(f"s_lshl_b32 s3, s{sWv}, 7")
    a(f"v_cndmask_b32 v{m1}, 0, -1, vcc")
    a(f"v_cndmask_b32 v{m2}, 0, -1, {sr(sT0,2)}")
    a(f"v_lshl_add_u32 v{vEnd}, v{vLane}, 2, s3")
    a(f"s_waitcnt vmcnt({pr[0]})")
    st("idx")
    for r in range(NR):
        a(f"s_mov_b64 exec, {mk0(r)}")
        a(f"v_lshlrev_b32_sdwa v{vKa+r}, v{two}, v{vW0+r} dst_sel:DWORD dst_unused:UNUSED_PAD src0_sel:DWORD src1_sel:BYTE_0")
        a(f"ds_add_rtn_u32 v{vRk0+r}, v{vKa+r}, v{one} offset:{HIST}")
    a(f"s_cmp_eq_u64 {sr(sAny,2)}, 0")
    a("s_cbranch_scc1 K2_NOW1B")
    for r in range(NR):
        a(f"s_mov_b64 exec, {mk1(r)}")
        a(f"s_cbranch_execz K2_W1B_{r}")
        a(f"v_lshlrev_b32_sdwa v{vPo+r}, v{two}, v{vW1+r} dst_sel:DWORD dst_unused:UNUSED_PAD src0_sel:DWORD src1_sel:BYTE_0")
        a(f"ds_add_rtn_u32 v{vRk1+r}, v{vPo+r}, v{one} offset:{HIST}")
        a.label(f"K2_W1B_{r}")
    a.label("K2_NOW1B")
    a("s_mov_b64 exec, -1")
    pay(sched[1])
    a("s_waitcnt lgkmcnt(0)")
    a("s_barrier")
    st("hist")
    h = t; b = t + 8
    a(f"ds_read_b128 {vr(h,4)}, v{t+6} offset:{HIST}")
    a(f"ds_read_b32 v{t+7}, v{t+7}")
    pay(sched[2])
    for r in range(NR):
        a(f"v_and_b32 v{vW0+r}, 0xfffffe00, v{vW0+r}")
    a("s_waitcnt lgkmcnt(0)")
    s_, y, r8 = t + 4, t + 5, h + 1
    a(f"v_add_u32 v{b+2}, v{h}, v{h+1}")
    a(f"v_add_u32 v{b+3}, v{b+2}, v{h+2}")
    a(f"v_add_u32 v{h+3}, v{b+3}, v{h+3}")
    a(f"v_readfirstlane_b32 s{sT0}, v{t+7}")
    a("s_nop 0")
    a(f"v_and_b32_dpp v{y}, v{h+3}, v{m1} row_shr:1 row_mask:0xf bank_mask:0xf bound_ctrl:0")
    a(f"v_add_u32 v{s_}, v{h+3}, v{y}")
    a("s_nop 1")
    a(f"v_and_b32_dpp v{y}, v{s_}, v{m2} row_shr:2 row_mask:0xf bank_mask:0xf bound_ctrl:0")
    a(f"v_add_u32 v{s_}, v{s_}, v{y}")
    a("s_nop 1")
    a(f"v_add_u32_dpp v{s_}, v{s_}, v{s_} row_shr:4 row_mask:0xf bank_mask:0xa")
    a(f"v_add_u32 v{r8}, 7, v{s_}")
    a(f"v_and_b32 v{r8}, -8, v{r8}")
    a(f"v_sub_u32 v{b}, v{s_}, v{h+3}")
    a("s_nop 0")
    a(f"v_mov_b32_dpp v{y}, v{r8} row_newbcast:15 row_mask:0xf bank_mask:0xf")
    a(f"v_add_u32_dpp v{b}, v{r8}, v{b} row_newbcast:7 row_mask:0xf bank_mask:0xc")
    a("s_nop 0")
    a(f"v_add_u32_dpp v{y}, v{r8}, v{y} row_newbcast:7 row_mask:0xf bank_mask:0xf")
    a(f"v_sub_u32 v{b}, v{b}, v{y}")
    a("s_nop 0")
    a(f"v_add_u32_dpp v{y}, v{y}, v{y} row_bcast:15 row_mask:0xa bank_mask:0xf")
    a("s_nop 1")
    a(f"v_add_u32_dpp v{y}, v{y}, v{y} row_bcast:31 row_mask:0xc bank_mask:0xf")
    a(f"v_add_u32 v{b}, v{b}, v{y}")
    a(f"v_add_u32 v{b+1}, v{b}, v{h}")
    a(f"v_add_u32 v{b+2}, v{b}, v{b+2}")
    a(f"v_add_u32 v{b+3}, v{b}, v{b+3}")
    a(f"ds_write_b128 v{t+6}, {vr(b,4)} offset:{BASE}")
    for r in range(NR):
        a(f"s_mov_b64 exec, {mk0(r)}")
        a(f"ds_read_b32 v{vKa+r}, v{vKa+r} offset:{BASE}")
    a("s_mov_b64 exec, -1")
    a(f"ds_read_b32 v{vEnd}, v{vEnd} offset:{BASE}")
    a(f"v_readlane_b32 s{sTot}, v{y}, 63        ; padded records in this batch")
    a(f"s_cmp_lg_u32 s{sSlow}, 0")
    a("s_cbranch_scc1 K2_FEAS")
    a(f"s_cmp_gt_u32 s{sTot}, {CAP-TAILW}")
    a("s_cbranch_scc1 K2_GOSLOW")
    a(f"s_cmp_lg_u32 s{sT0}, 0")
    a("s_cbranch_scc1 K2_GOSLOW")
    a.label("K2_FEAS")
    pay(sched[3])
    a(f"s_cmp_eq_u64 {sr(sAny,2)}, 0")
    a("s_cbranch_scc1 K2_NOW1C")
    for r in range(NR):
        a(f"s_mov_b64 exec, {mk1(r)}")
        a(f"s_cbranch_execz K2_W1C_{r}")
        a(f"ds_read_b32 v{vPo+r}, v{vPo+r} offset:{BASE}")
        a(f"v_and_b32 v{vW1+r}, 0xfffffe00, v{vW1+r}")
        a("s_waitcnt lgkmcnt(0)")
        a(f"v_add_u32 v{vPo+r}, v{vPo+r}, v{vRk1+r}")
        a(f"v_lshl_add_u32 v{vRk1+r}, v{vPo+r}, 2, s{sWOFF}")
        a(f"v_lshl_add_u32 v{vPo+r}, v{vPo+r}, 4, s{sPOFF}")
        a(f"ds_write_b32 v{vRk1+r}, v{vW1+r}")
        a(f"ds_write_b128 v{vPo+r}, {vr(vP1+4*r,4)}")
        a.label(f"K2_W1C_{r}")
    a.label("K2_NOW1C")
    a("s_waitcnt lgkmcnt(0)")
    for r in range(NR):
        a(f"s_mov_b64 exec, {mk0(r)}")
        a(f"v_add_u32 v{vKa+r}, v{vKa+r}, v{vRk0+r}")
        a(f"v_lshl_add_u32 v{vRk0+r}, v{vKa+r}, 2, s{sWOFF}")
        a(f"ds_write_b32 v{vRk0+r}, v{vW0+r}")
    a("s_mov_b64 exec, -1")
    a(f"v_readlane_b32 s{sPos}, v{vEnd}, 0")
    a(f"v_readlane_b32 s{sLim}, v{vEnd}, 31     ; end of this wave's records")
    a(f"v_readlane_b32 s{sEnd}, v{vEnd}, 1")
    a(f"v_mov_b32 v{t+2}, {DUMMY}")
    a(f"s_sub_u32 s3, 0, s{sLim}")
    a(f"s_and_b32 s3, s3, 7")
    a(f"s_cmp_eq_u32 s{sWv}, {NW-1}")
    a(f"s_cselect_b32 s3, {TAILW}, s3")
    a(f"v_add_u32 v{t}, s{sLim}, v{vLane}")
    a(f"v_lshl_add_u32 v{t+1}, v{t}, 2, s{sWOFF}")
    a(f"v_lshl_add_u32 v{vPW}, s{sPos}, 2, v{vLW}")
    a(f"s_bfm_b64 exec, s3, 0")
    a(f"ds_write_b32 v{t+1}, v{t+2}             ; pad words")
    a("s_mov_b64 exec, -1")
    pay(sched[4])
    a(f"v_lshrrev_b32 v{t}, 4, v{vLane}          ; g")
    a(f"v_bfe_u32 v{t+1}, v{vLane}, 2, 2")
    a(f"v_lshlrev_b32 v{t+3}, 5, v{t}")
    a(f"v_lshl_add_u32 v{t+3}, v{t+1}, 1, v{t+3}")
    a(f"v_lshlrev_b32 v{t+2}, 4, v0")
    a("s_waitcnt lgkmcnt(0)")
    a("s_barrier")
    st("barA")
    vWi = vW1
    for d in range(D):
        a(f"ds_read_b128 {vr(vWi+4*d,4)}, v{vPW} offset:{32*d}")
    a(f"ds_read_b128 {vr(vWn,4)}, v{vPW} offset:{32*D}")
    for v_ in range(4):
        a(f"global_load_ushort v{t+4+v_}, v{t+3}, {sr(sCG,2)} offset:{8*v_}")
    for r in range(NR):
        a(f"v_lshl_add_u32 v{vKa+r}, v{vKa+r}, 4, s{sPOFF}")
    a(f"v_add_u32 v{vPW}, {32*(D+1)}, v{vPW}")
    a(f"v_mad_u32_u24 v{vPS}, v{vLive}, s{sPos}, v{vLS}")
    a(f"v_lshl_add_u32 v{vPE}, s{sPos}, 4, v{vLE}")
    a(f"s_mul_i32 s3, s{sWv}, {PS}")
    a(f"s_add_u32 m0, s3, {WOL}")
    a("s_nop 0")
    a(f"buffer_load_dwordx4 v{t+2}, {sr(sWS4,4)}, 0 offen lds")
    a(f"s_cmp_lg_u32 s{sWv}, 0")
    a("s_cbranch_scc1 K2_NOWR")
    a(f"s_mov_b32 m0, {CONST}")
    a("s_mov_b64 exec, 0xffffffff")
    a(f"global_load_lds_dwordx4 v{t+2}, {sr(sWR,2)}   ; w_r")
    a("s_mov_b64 exec, -1")
    a.label("K2_NOWR")
    a(f"s_mov_b32 m0, s{sRB}")
    a("s_waitcnt lgkmcnt(0)")
    for i in range(4 * D):
        a(f"v_add_u32 v{vWi+i}, v{vWi+i}, v{vOff}")
    def dma(src):
        for i in range(4):
            so = f"s{sSO+i}" if i < 3 else "0"
            a(f"buffer_load_dwordx4 v{src+i}, {sr(sXS,4)}, {so} offen offset:{PO[i]} lds")
    def dma0(d):
        a(f"s_add_u32 s3, s{sPos}, {8*d}")
        a(f"s_cmp_lt_u32 s3, s{sLim}")
        a("s_cselect_b64 exec, -1, 1")
        dma(vWi + 4 * d)
        a("s_mov_b64 exec, -1")
    D0 = o.D0 if o.D0 >= 0 else D
    for d in range(D0):
        dma0(d)
        a(f"s_add_u32 m0, m0, {SLOT}")
    st("dma0")
    for r in range(NR):
        a(f"s_waitcnt vmcnt({4*D0 + 5 + NR - 1 - r})")
        a(f"s_mov_b64 exec, {mk0(r)}")
        a(f"ds_write_b128 v{vKa+r}, {vr(vP0+4*r,4)}")
    a("s_mov_b64 exec, -1")
    for d in range(D0, D):
        dma0(d)
        a(f"s_add_u32 m0, m0, {SLOT}")
    a(f"s_cmp_lg_u32 s{sSlow}, 0")
    a("s_cbranch_scc1 K2_NOCLR")
    for i in range(0, 80, 2):
        a(f"v_pk_mul_f32 {vr(vAcc+i,2)}, 0, 0") if False else None
    for i in range(80):
        a(f"v_mov_b32 v{vAcc+i}, 0")
    a.label("K2_NOCLR")
    a(f"s_waitcnt vmcnt({4*D}) lgkmcnt(0)")
    a("s_barrier")
    st("barB")
    st.clk(74)
    a(f"s_mov_b32 m0, s{sRB}")
    def lds_next():
        a(f"ds_read2_b64 {vr(vSh,4)}, v{vPS} offset0:0 offset1:8")
        a(f"ds_read_u16_d16_hi v{vEa}, v{vPE}")
        a(f"ds_read_u16_d16_hi v{vEb}, v{vPE} offset:64")
    a(f"v_mov_b32 v{vEa}, 0")
    a(f"v_mov_b32 v{vEb}, 0")
    if o.ts: a("s_waitcnt lgkmcnt(0)")
    lds_next()
    a(f"v_lshl_or_b32 v{vCg}, v{t+5}, 16, v{t+4}")
    a(f"v_lshl_or_b32 v{vCg+1}, v{t+7}, 16, v{t+6}")
    a(f"v_and_b32 v{t+2}, 3, v{vLane}")
    a(f"v_lshlrev_b32 v{t+3}, 7, v{t+1}")
    a(f"v_lshl_add_u32 v{t+3}, v{t+2}, 3, v{t+3}")
    a(f"v_add_u32 v{t+3}, {CONST}, v{t+3}")
    for tt in range(4):
        a(f"ds_read_b64_tr_b16 {vr(vWr+4*tt+2,2)}, v{t+3} offset:{32*tt}")
    a(f"v_mul_u32_u24 v{t+3}, {2*PS}, v{t+1}")
    a(f"v_lshl_add_u32 v{t+3}, v{t}, 8, v{t+3}")
    a(f"v_lshl_add_u32 v{t+3}, v{t+2}, 4, v{t+3}")
    a(f"v_add_u32 v{t+3}, {WOL}, v{t+3}")
    fr = []
    for tp in range(4):
        for s2_ in range(2):
            for kp in range(2):
                off = s2_ * PS + kp * 128 + (tp >> 1) * 64 + (tp & 1) * 8
                fr.append(f"ds_read_b64_tr_b16 {vr(vWo + (tp*2+s2_)*4 + 2*kp, 2)}, v{t+3} offset:{off}")
    for x in fr[:8]: a(x)
    a("s_waitcnt lgkmcnt(8)")
    for tt in range(4):
        w = vWr + 4 * tt
        a(f"v_lshlrev_b32 v{w}, 16, v{w+2}")
        a(f"v_and_b32 v{w+1}, 0xffff0000, v{w+2}")
        a(f"v_lshlrev_b32 v{w+2}, 16, v{w+3}")
        a(f"v_and_b32 v{w+3}, 0xffff0000, v{w+3}")
    a("s_waitcnt lgkmcnt(0)")
    for x in fr[8:]: a(x)
    a("s_waitcnt lgkmcnt(4)")
    a(f"v_add_u32 v{vTr}, m0, v{vTrL}")
    a(f"s_mov_b32 s{sI}, 1")
    if o.prio == 1: a(f"s_setprio {P-1}")
    if o.prio in (2, 3):
        a(f"s_cmp_lt_u32 s{sWv}, 4")
        a("s_cbranch_scc1 K2_PR0")
        a("s_setprio 1")
        a.label("K2_PR0")
    a(f"s_cmp_eq_u32 s{sPos}, s{sLim}")
    a("s_cbranch_scc1 K2_DONE")
    a(f"s_sub_u32 s{sLim}, s{sLim}, {8*(D-1)}")
    a("s_branch K2_L0")
    for _ in range(o.pad): a("s_nop 0")

    def mains(j, T):
        if "nomain" in o.abl: return
        for tt in range(4):
            c_ = vr(vAcc + 16 * j + 4 * tt, 4)
            a(f"v_mfma_f32_16x16x32_bf16 {c_}, {vr(T,4)}, {vr(vX+4*tt,4)}, {c_}")
    for j in range(5):
        if o.align: a(f".p2align {o.align}")
        a.label(f"K2_M{j}")
        mains(j, vT)
        a.label(f"K2_L{j}")
        def trreads():
            if "notr" in o.abl: return
            for tt in range(4):
                off = (tt >> 1) * 256 + (tt & 1) * 32
                a(f"ds_read_b64_tr_b16 {vr(vX+4*tt,2)}, v{vTr} offset:{off}")
                a(f"ds_read_b64_tr_b16 {vr(vX+4*tt+2,2)}, v{vTr} offset:{off+512}")
        def amfma():
            if "not" in o.abl: return
            a(f"v_mfma_f32_16x16x16_bf16 {vr(vD,4)}, {vr(vSh,2)}, {vr(vCg,2)}, 0")
            a(f"v_mfma_f32_16x16x16_bf16 {vr(vD+4,4)}, {vr(vSh+2,2)}, {vr(vCg,2)}, 0")
        def muls():
            if "not" in o.abl: return
            if o.pk:
                for i in range(4):
                    a(f"v_pk_mul_f32 {vr(vD+2*i,2)}, {vr(vD+2*i,2)}, {vr(vEa if i < 2 else vEb,2)} op_sel:[0,0] op_sel_hi:[1,0]")
            else:
                for i in range(8):
                    a(f"v_mul_f32 v{vD+i}, v{vD+i}, v{vEa if i < 4 else vEb}")
        def cvts():
            if "not" in o.abl: return
            for i in range(4):
                a(f"v_cvt_pk_bf16_f32 v{vT+i}, v{vD+2*i}, v{vD+2*i+1}")
        def ring():
            if D == 2:
                a(f"s_xor_b32 m0, m0, s{sRE}")
            else:
                a(f"s_add_u32 m0, m0, {SLOT}")
                a(f"s_cmp_eq_u32 m0, s{sRE}")
                a(f"s_cselect_b32 m0, s{sRB}, m0")
        if o.sched == 0:
            a(f"s_waitcnt vmcnt({4*(D-1)})")
            trreads()
            a(f"s_add_u32 s{sPos}, s{sPos}, 8")
            a("s_waitcnt lgkmcnt(8)" if "notr" not in o.abl else "s_waitcnt lgkmcnt(0)")
            amfma()
            for i in range(4):
                a(f"v_add_u32 v{vDa+i}, v{vWn+i}, v{vOff}")
            a(f"ds_read_b128 {vr(vWn,4)}, v{vPW}")
            a(f"v_add_u32 v{vPS}, v{vPS}, v{vStep}")
            a(f"v_add_u32 v{vPW}, 32, v{vPW}")
            a(f"v_add_u32 v{vPE}, v{vPE}, v{v128}")
            a(f"s_cmp_lt_i32 s{sPos}, s{sLim}")
            muls()
            lds_next()
            a("s_cselect_b64 exec, -1, 1")
            a("s_waitcnt lgkmcnt(4)")
            dma(vDa)
            a("s_mov_b64 exec, -1")
            ring()
            cvts()
            a(f"v_add_u32 v{vTr}, m0, v{vTrL}")
        elif o.sched == 1:
            a("s_waitcnt lgkmcnt(0)")
            amfma()
            for i in range(4):
                a(f"v_add_u32 v{vDa+i}, v{vWn+i}, v{vOff}")
            a(f"ds_read_b128 {vr(vWn,4)}, v{vPW}")
            a(f"v_add_u32 v{vPS}, v{vPS}, v{vStep}")
            a(f"v_add_u32 v{vPW}, 32, v{vPW}")
            a(f"v_add_u32 v{vPE}, v{vPE}, v{v128}")
            a(f"s_add_u32 s{sPos}, s{sPos}, 8")
            a(f"s_cmp_lt_i32 s{sPos}, s{sLim}")
            a(f"s_waitcnt vmcnt({4*(D-1)})")
            trreads()
            muls()
            lds_next()
            cvts()
            a("s_cselect_b64 exec, -1, 1")
            a("s_waitcnt lgkmcnt(3)")
            dma(vDa)
            a("s_mov_b64 exec, -1")
            ring()
            a(f"v_add_u32 v{vTr}, m0, v{vTrL}")
        else:
            a("s_waitcnt lgkmcnt(0)")
            amfma()
            for i in range(4):
                a(f"v_add_u32 v{vDa+i}, v{vWn+i}, v{vOff}")
            a(f"ds_read_b128 {vr(vWn,4)}, v{vPW}")
            a(f"v_add_u32 v{vPS}, v{vPS}, v{vStep}")
            a(f"v_add_u32 v{vPW}, 32, v{vPW}")
            a(f"v_add_u32 v{vPE}, v{vPE}, v{v128}")
            a(f"s_add_u32 s{sPos}, s{sPos}, 8")
            a(f"s_cmp_lt_i32 s{sPos}, s{sLim}")
            muls()
            lds_next()
            cvts()
            a(f"s_waitcnt vmcnt({4*(D-1)})")
            trreads()
            a("s_cselect_b64 exec, -1, 1")
            a("s_waitcnt lgkmcnt(0)")
            dma(vDa)
            a("s_mov_b64 exec, -1")
            ring()
            a(f"v_add_u32 v{vTr}, m0, v{vTrL}")
        a(f"s_cmp_gt_u32 s{sEnd}, s{sPos}")
        a(f"s_cbranch_scc1 K2_M{j}")
        a.label(f"K2_B{j}")
        a(f"s_sub_u32 s3, s{sPos}, s{sEnd}")
        a(f"s_add_u32 s{sI}, s{sI}, {4 if j == 4 else 1}")
        a(f"v_cmp_lt_u32 {sr(sMA,2)}, s3, v{vRA}")
        a(f"v_cmp_lt_u32 {sr(sMB,2)}, s3, v{vRB}")
        a(f"v_readlane_b32 s{sEnd}, v{vEnd}, s{sI}")
        for i in range(4):
            a(f"v_cndmask_b32 v{vTm+i}, 0, v{vT+i}, {sr(sMA if i < 2 else sMB,2)}")
        for i in range(4):
            a(f"v_xor_b32 v{vT+i}, v{vT+i}, v{vTm+i}")
        mains(j, vTm)
        if j == 4:
            a(f"s_cmp_gt_u32 s{sI}, {8*P}")
            a("s_cbranch_scc1 K2_DONE")
            if o.prio == 1:
                for ph in range(1, P):
                    a(f"s_cmp_lg_u32 s{sI}, {8*ph+1}")
                    a(f"s_cbranch_scc1 K2_PR{ph}")
                    a(f"s_setprio {P-1-ph}")
                    a.label(f"K2_PR{ph}")
            if o.prio == 3:
                a(f"s_cmp_lg_u32 s{sI}, {8*(P//2)+1}")
                a(f"s_cbranch_scc1 K2_PR1")
                a(f"s_setprio 0")
                a.label(f"K2_PR1")
        a(f"s_cmp_gt_u32 s{sEnd}, s{sPos}")
        a(f"s_cbranch_scc0 K2_B{(j+1)%5}")
        if j == 4 or o.align: a(f"s_branch K2_M{(j+1)%5}")

    a.label("K2_GOSLOW")
    a(f"s_max_u32 s{sMaxc}, s{sT0}, 32")
    a(f"s_mov_b32 s{sSlow}, 1")
    a(f"s_mov_b32 s{sHalf}, 1")
    for i in range(80):
        a(f"v_mov_b32 v{vAcc+i}, 0")
    a("s_waitcnt vmcnt(0) lgkmcnt(0)")
    a("s_barrier")
    a("s_branch K2_BATCH")

    a.label("K2_SLOWNEXT")
    a("s_waitcnt vmcnt(0) lgkmcnt(0)")
    a("s_barrier")
    a(f"s_add_u32 s{sHalf}, s{sHalf}, 1")
    a(f"s_cmp_le_u32 s{sHalf}, 2")
    a("s_cbranch_scc1 K2_BATCH")
    a(f"s_mov_b32 s{sHalf}, 1")
    a(f"s_add_u32 s{sWin}, s{sWin}, 1")
    a(f"s_lshl_b32 s{sT0}, s{sWin}, 4")
    a(f"s_cmp_lt_u32 s{sT0}, s{sMaxc}")
    a("s_cbranch_scc1 K2_BATCH")
    a("s_branch K2_EPI")

    a.label("K2_DONE")
    st.clk(76)
    st("loop")
    a(f"s_cmp_lg_u32 s{sSlow}, 0")
    a("s_cbranch_scc1 K2_SLOWNEXT")
    a.label("K2_EPI")
    e = 44; eP = 48; eB = 58; eD = 2
    a(f"v_and_b32 v{e+1}, 15, v{vLane}")
    a(f"v_lshrrev_b32 v{e+2}, 4, v{vLane}")
    a(f"v_lshl_add_u32 v{e}, v{vLane}, 3, s{sRB}")
    a(f"v_lshlrev_b32 v{e+3}, 7, v{e+1}")
    a(f"v_lshl_add_u32 v{e+3}, v{e+2}, 4, v{e+3}")
    a(f"v_add_u32 v{e+3}, s{sRB}, v{e+3}")
    def red(j):
        for tt in range(4):
            ac = vAcc + 16 * j + 4 * tt
            a(f"v_pk_mul_f32 {vr(ac,2)}, {vr(ac,2)}, {vr(vWr+4*tt,2)}")
        for tt in range(4):
            ac = vAcc + 16 * j + 4 * tt
            a(f"v_pk_fma_f32 {vr(ac,2)}, {vr(ac+2,2)}, {vr(vWr+4*tt+2,2)}, {vr(ac,2)}")
        for tt in range(4):
            ac = vAcc + 16 * j + 4 * tt
            a(f"v_add_f32 v{ac}, v{ac}, v{ac+1}")
        ac = vAcc + 16 * j
        a(f"v_cvt_pk_bf16_f32 v{eP+2*j}, v{ac}, v{ac+4}")
        a(f"v_cvt_pk_bf16_f32 v{eP+2*j+1}, v{ac+8}, v{ac+12}")
        if j == 0: a("s_waitcnt vmcnt(0) lgkmcnt(0)")
        a(f"ds_write_b64 v{e}, {vr(eP+2*j,2)} offset:{512*j}")
    def frag(hh):
        for s2_ in range(2):
            a(f"ds_read_b128 {vr(eB+8*hh+4*s2_,4)}, v{e+3} offset:{2048*hh + 64*s2_}")
    for j in range(4): red(j)
    frag(0)
    red(4)
    frag(1)
    a(f"v_lshrrev_b32 v{e}, 2, v{e+1}")
    a(f"s_add_u32 s3, s{sN0}, s{sWv}")
    a(f"v_lshl_add_u32 v{e}, v{e}, 3, s3         ; node")
    a(f"v_and_b32 v{e+1}, 3, v{e+1}")
    a(f"v_lshlrev_b32 v{e+1}, 7, v{e+1}")
    a(f"v_lshl_add_u32 v{e+1}, v{e+2}, 4, v{e+1}")
    a(f"v_lshl_add_u32 v{e+1}, v{e}, 9, v{e+1}")
    a(f"v_add_u32 v{e+2}, {32*512}, v{e+1}")
    a(f"s_add_u32 s3, s3, 32")
    a(f"s_cmp_lt_u32 s3, s{sN1}")
    a(f"s_cselect_b32 s{sT0}, 0x000f000f, 0")
    a(f"s_mov_b32 s{sT1}, s{sT0}")
    stm = FL[o.k2st]
    for hh in range(2):
        a(f"s_waitcnt lgkmcnt({3 - 3*hh})")
        for s2_ in range(2):
            for tp in range(4):
                d_ = vr(eD + 16 * hh + 4 * tp, 4)
                c_ = "0" if s2_ == 0 else d_
                a(f"v_mfma_f32_16x16x32_bf16 {d_}, {vr(vWo+(tp*2+s2_)*4,4)}, {vr(eB+8*hh+4*s2_,4)}, {c_}")
    for hh in range(2):
        for i in range(8):
            a(f"v_cvt_pk_bf16_f32 v{74+8*hh+i}, v{eD+16*hh+2*i}, v{eD+16*hh+2*i+1}")
        if hh == 1:
            a(f"s_mov_b64 exec, {sr(sT0,2)}")
            a("s_cbranch_execz K2_FIN")
        a(f"global_store_dwordx4 v{e+1+hh}, {vr(74+8*hh,4)}, {sr(sOUT,2)}{stm}")
        a(f"global_store_dwordx4 v{e+1+hh}, {vr(78+8*hh,4)}, {sr(sOUT,2)} offset:64{stm}")
    a.label("K2_FIN")
    st("epi")
    if o.ts:
        a("s_waitcnt vmcnt(0)")
    st("end")
    st.dump(sWS, 2)
    if ENC[0]:
        a(f"s_cmp_eq_u32 s2, {ENC[1]}")
        a("s_cbranch_scc0 K2_END")
        a(f"s_cmp_eq_u32 s{sWv}, 0")
        a("s_cbranch_scc0 K2_END")
        a(f"s_add_u32 s56, s{sWS}, {TS_OFF}")
        a(f"s_addc_u32 s57, s{sWS+1}, 0")
        a("s_load_dwordx2 s[58:59], s[56:57], 0")
        a("s_waitcnt lgkmcnt(0)")
        if ENC[0].startswith("2"): a("s_mov_b32 s59, s54")
        a("s_sub_u32 s59, s59, s58")
        a("s_min_u32 s59, s59, 10000")
        a("s_add_u32 s59, s59, 6000")
        a.label("K2_SPIN")
        a("s_memrealtime s[60:61]")
        a("s_waitcnt lgkmcnt(0)")
        a("s_sub_u32 s60, s60, s58")
        a("s_cmp_lt_u32 s60, s59")
        a("s_cbranch_scc1 K2_SPIN")
    a.label("K2_END")
    a("s_endpgm")
    return dict(lds=LDS, vgpr=NV, threads=NT, cap=CAP)

def kd(name, vgpr):
    v = (vgpr + 7) // 8 * 8
    return f""".amdhsa_kernel {name}
  .amdhsa_next_free_vgpr {v}
  .amdhsa_next_free_sgpr 102
  .amdhsa_accum_offset {v}
  .amdhsa_group_segment_fixed_size 0
  .amdhsa_kernarg_size 88
  .amdhsa_user_sgpr_count 2
  .amdhsa_user_sgpr_kernarg_segment_ptr 1
  .amdhsa_system_sgpr_workgroup_id_x 1
  .amdhsa_float_denorm_mode_32 3
.end_amdhsa_kernel
"""

def main():
    p = argparse.ArgumentParser()
    p.add_argument("-o", default="out.s")
    p.add_argument("--D", type=int, default=2)
    p.add_argument("--D0", type=int, default=1)
    p.add_argument("--P", type=int, default=2)
    p.add_argument("--ts", type=int, default=0)
    p.add_argument("--k1ld", default="nt")
    p.add_argument("--k1st", default="plain")
    p.add_argument("--k2st", default="sc1")
    p.add_argument("--k1ord", default="d/s/he")
    p.add_argument("--psched", default="4,2,1,1,0")
    p.add_argument("--ipf", type=int, default=0)
    p.add_argument("--mall", type=int, default=0)
    p.add_argument("--pf", type=int, default=0)
    p.add_argument("--touchfirst", type=int, default=0)
    p.add_argument("--cpf", type=int, default=1)
    p.add_argument("--prio", type=int, default=3)
    p.add_argument("--align", type=int, default=0)
    p.add_argument("--capmax", type=int, default=3200)
    p.add_argument("--abl", default="")
    p.add_argument("--pk", type=int, default=0)
    p.add_argument("--sched", type=int, default=0)
    p.add_argument("--pad", type=int, default=0)
    p.add_argument("--fused", type=int, default=0)
    p.add_argument("--touch", type=int, default=0)
    p.add_argument("--enc", default="")
    p.add_argument("--encwg", type=int, default=0)
    o = p.parse_args()
    o.abl = o.abl.split(",")
    ENC[0] = o.enc or None; ENC[1] = o.encwg
    a = Asm()
    i1 = gen_k1(a, o)
    i2 = gen_k2(a, o)
    body = a.text()
    n = check(body)
    out = HDR
    if o.fused:
        if o.fused == 1: out += f"; @launch grid=({NCH},1,1) block=(512,1,1) lds={i2['lds']}\n"
        else: out += f"; @launch kernel={MAIN} grid=({NCH},1,1) block=(512,1,1) lds={i2['lds']}\n"
        out += '.amdgcn_target "amdgcn-amd-amdhsa--gfx950"\n.text\n'
        out += f".globl {MAIN}\n.type {MAIN},@function\n" + body
        out += '.section .rodata,"a"\n.p2align 6\n' + kd(MAIN, i2["vgpr"])
    else:
        out += f"; @launch kernel=bucket_kernel grid=({NCH},1,1) block=({i1['threads']},1,1) lds={i1['lds']}\n"
        out += f"; @launch kernel=gather_kernel grid=({NCH},1,1) block=({i2['threads']},1,1) lds={i2['lds']}\n"
        out += '.amdgcn_target "amdgcn-amd-amdhsa--gfx950"\n.text\n'
        out += ".globl bucket_kernel\n.type bucket_kernel,@function\n.globl gather_kernel\n.type gather_kernel,@function\n"
        out += body
        out += '.section .rodata,"a"\n.p2align 6\n' + kd("bucket_kernel", i1["vgpr"]) + ".p2align 6\n" + kd("gather_kernel", i2["vgpr"])
    open(o.o, "w").write(out)
    print(f"wrote {o.o}: k2 {i2} hazards {n}", file=sys.stderr)

if __name__ == "__main__":
    main()
```
